```python
import torch

def _softmax(x, axis=-1):
    return torch.softmax(x, dim=axis)

def _gelu(x):
    return torch.nn.functional.gelu(x, approximate='tanh')

def _silu(x):
    return torch.nn.functional.silu(x)

def _sigmoid(x):
    return torch.sigmoid(x)

def _layernorm(x, axis=-1, eps=1e-05):
    m = x.mean(dim=axis, keepdim=True)
    v = x.var(dim=axis, keepdim=True, unbiased=False)
    return (x - m) / torch.sqrt(v + eps)

def _scatter_add(tgt, idx, src, axis=0):
    return tgt.clone().index_add_(axis, idx, src)

def _segment_sum(src, seg, n):
    out = torch.zeros((n,) + src.shape[1:], dtype=src.dtype)
    return out.index_add_(0, seg, src)

def _pad(x, pw):
    flat = tuple((v for pair in reversed(pw) for v in pair))
    return torch.nn.functional.pad(x, flat)
kernel_name = 'adaLN_cond__spectral_fnet__glu_gated_glu__prompt'

def setup_inputs():

    _w = lambda a: (lambda t: t.to(torch.bfloat16) if t.is_floating_point() else t)(torch.as_tensor(a))

    def _A_setup():
        B, S, D = (1, 2048, 448)
        ns = torch.arange(S)[:, None] * torch.arange(S)[None, :]
        nd = torch.arange(D)[:, None] * torch.arange(D)[None, :]
        Ws_re = torch.cos(-2.0 * torch.pi * ns / S).to(float)
        Ws_im = torch.sin(-2.0 * torch.pi * ns / S).to(float)
        Wd_re = torch.cos(-2.0 * torch.pi * nd / D).to(float)
        Wd_im = torch.sin(-2.0 * torch.pi * nd / D).to(float)
        return {'x': _w((lambda *s: torch.randn(*s, dtype=torch.bfloat16) * 0.05)(B, S, D)), 'dft_seq_re': _w(Ws_re), 'dft_seq_im': _w(Ws_im), 'dft_hid_re': _w(Wd_re), 'dft_hid_im': _w(Wd_im)}
    _A_in = _A_setup()

    def _B_setup():
        B, S, D, F = (1, 2048, 448, 1792)
        return {'x': _w((lambda *s: torch.randn(*s, dtype=torch.bfloat16) * 0.05)(B, S, D)), 'w_gate': _w((lambda *s: torch.randn(*s, dtype=torch.bfloat16) * 3.2)(D, F)), 'w_up': _w((lambda *s: torch.randn(*s, dtype=torch.bfloat16) * 1.6)(D, F)), 'w_down': _w((lambda *s: torch.randn(*s, dtype=torch.bfloat16) * 1.6)(F, D))}
    _B_in = _B_setup()
    return {'A_x': _A_in['x'], 'A_dft_seq_re': _A_in['dft_seq_re'], 'A_dft_seq_im': _A_in['dft_seq_im'], 'A_dft_hid_re': _A_in['dft_hid_re'], 'A_dft_hid_im': _A_in['dft_hid_im'], 'B_x': _B_in['x'], 'B_w_gate': _B_in['w_gate'], 'B_w_up': _B_in['w_up'], 'B_w_down': _B_in['w_down'], 'c': _w((lambda *s: torch.randn(*s, dtype=torch.bfloat16) * 0.1)(1, 448) * 8.0), 'w_mod': _w((lambda *s: torch.randn(*s, dtype=torch.bfloat16) * 0.1)(448, 6 * 448) * 448 ** (-0.5) * 8.0)}

def reference(A_x, A_dft_seq_re, A_dft_seq_im, A_dft_hid_re, A_dft_hid_im, B_x, B_w_gate, B_w_up, B_w_down, c, w_mod):

    def _A_ref(x, dft_seq_re, dft_seq_im, dft_hid_re, dft_hid_im):
        a = torch.einsum('bsd,ed->bse', x, dft_hid_re)
        b = torch.einsum('bsd,ed->bse', x, dft_hid_im)
        y = torch.einsum('ts,bse->bte', dft_seq_re, a) - torch.einsum('ts,bse->bte', dft_seq_im, b)
        return y

    def _B_ref(x, w_gate, w_up, w_down):
        g = torch.einsum('bsd,df->bsf', x, w_gate)
        u = torch.einsum('bsd,df->bsf', x, w_up)
        h = _sigmoid(g) * u
        return torch.einsum('bsf,fd->bsd', h, w_down)
    x = A_x
    mod = (_silu(c) @ w_mod).reshape(c.shape[0], 6, 1, -1)
    sa, ca, ga, sb, cb, gb = (mod[:, 0].clone(), mod[:, 1].clone(), mod[:, 2].clone(), mod[:, 3].clone(), mod[:, 4].clone(), mod[:, 5].clone())
    h = _layernorm(x, axis=-1) * (1 + ca) + sa
    x = x + ga * _A_ref(h, A_dft_seq_re, A_dft_seq_im, A_dft_hid_re, A_dft_hid_im)
    h = _layernorm(x, axis=-1) * (1 + cb) + sb
    x = x + gb * _B_ref(h, B_w_gate, B_w_up, B_w_down)
    return x
```

```python
import re

TRANS = ("v_exp_f32", "v_log_f32", "v_rcp_f32", "v_rsq_f32", "v_sqrt_f32", "v_sin_f32", "v_cos_f32")
RMW = ("v_fmac_f32", "v_dot2c_f32_bf16", "v_dot2c_f32_f16", "v_pk_fmac_f16")


def regs_of(tok):
    tok = tok.strip()
    tok = tok.lstrip("-")
    if tok.startswith("abs(") and tok.endswith(")"):
        tok = tok[4:-1]
    if tok.startswith("|") and tok.endswith("|"):
        tok = tok[1:-1]
    m = re.fullmatch(r"([vsa])\[(\d+):(\d+)\]", tok)
    if m:
        return [(m.group(1), i) for i in range(int(m.group(2)), int(m.group(3)) + 1)]
    m = re.fullmatch(r"([vsa])(\d+)", tok)
    if m:
        return [(m.group(1), int(m.group(2)))]
    if tok == "vcc":
        return [("s", "vcc_lo"), ("s", "vcc_hi")]
    if tok in ("vcc_lo", "vcc_hi"):
        return [("s", tok)]
    if tok == "exec":
        return [("s", "exec")]
    if tok == "m0":
        return [("s", "m0")]
    return []


def split_ops(rest):
    out, depth, cur = [], 0, ""
    for ch in rest:
        if ch in "[(":
            depth += 1
        if ch in "])":
            depth -= 1
        if ch == "," and depth == 0:
            out.append(cur.strip())
            cur = ""
        else:
            cur += ch
    if cur.strip():
        out.append(cur.strip())
    return out


class Ins:
    def __init__(self, text):
        self.text = text
        t = text.split(";")[0].strip()
        parts = t.split(None, 1)
        self.op = parts[0]
        rest = parts[1] if len(parts) > 1 else ""
        ops = split_ops(rest)
        mods = ""
        if ops:
            last = ops[-1].split(None, 1)
            ops[-1] = last[0]
            mods = last[1] if len(last) > 1 else ""
        self.ops, self.mods = ops, mods
        op = self.op
        base = re.sub(r"_(e32|e64|dpp|sdwa)$", "", op)
        self.base = base
        self.defs, self.uses = [], []
        self.cls = "other"
        self.passes = 0
        self.mf_a = self.mf_b = self.mf_c = []
        self.store_data = []
        R = regs_of
        if op.startswith("v_mfma"):
            self.cls = "mfma"
            self.defs = R(ops[0])
            self.mf_a, self.mf_b, self.mf_c = R(ops[1]), R(ops[2]), R(ops[3])
            self.uses = self.mf_a + self.mf_b + self.mf_c
            self.passes = 8 if "32x32x16" in op else 4
            assert "32x32x16" in op or "16x16x32" in op
        elif op.startswith("v_"):
            self.cls = "valu"
            if base.startswith("v_permlane") and "swap" in base:
                self.defs = R(ops[0]) + R(ops[1])
                self.uses = R(ops[0]) + R(ops[1])
            elif base in ("v_add_co_u32", "v_sub_co_u32", "v_addc_co_u32"):
                self.defs = R(ops[0]) + R(ops[1])
                self.uses = sum((R(o) for o in ops[2:]), [])
            elif base == "v_nop":
                pass
            else:
                self.defs = R(ops[0])
                self.uses = sum((R(o) for o in ops[1:]), [])
                if base in RMW or op.endswith("_dpp") or "dst_unused:UNUSED_PRESERVE" in mods or base == "v_writelane_b32":
                    self.uses += R(ops[0])
                if base.startswith("v_cmpx"):
                    self.defs += [("s", "exec")]
        elif op.startswith("ds_"):
            self.cls = "ds"
            if op.startswith("ds_read") or op.startswith("ds_bpermute") or op.startswith("ds_swizzle"):
                self.defs = R(ops[0])
                self.uses = sum((R(o) for o in ops[1:]), [])
            else:
                self.uses = sum((R(o) for o in ops), [])
        elif op.startswith("buffer_") or op.startswith("global_"):
            self.cls = "vmem"
            allmods = " " + mods + " "
            if op in ("buffer_inv", "buffer_wbl2"):
                pass
            elif " lds " in allmods or "_lds_" in op:
                self.uses = sum((R(o) for o in ops), []) + [("s", "m0")]
            elif "load" in op:
                self.defs = R(ops[0])
                self.uses = sum((R(o) for o in ops[1:]), [])
                if "d16" in op:
                    self.uses += R(ops[0])
            elif "atomic" in op:
                self.uses = sum((R(o) for o in ops), [])
                if " sc0 " in allmods:
                    self.defs = R(ops[0])
            else:
                self.uses = sum((R(o) for o in ops), [])
                d = R(ops[0]) if op.startswith("buffer_") else R(ops[1])
                if len(d) >= 3:
                    self.store_data = d
        elif op.startswith("s_load") or op in ("s_memtime", "s_memrealtime"):
            self.cls = "smem"
            self.defs = R(ops[0])
            self.uses = sum((R(o) for o in ops[1:]), [])
        elif op.startswith("s_"):
            self.cls = "salu"
            if op.startswith("s_cmp") or op.startswith("s_bitcmp"):
                self.uses = sum((R(o) for o in ops), [])
            elif op in ("s_nop", "s_waitcnt", "s_barrier", "s_endpgm", "s_sleep", "s_setprio", "s_branch") or op.startswith("s_cbranch"):
                pass
            else:
                self.defs = R(ops[0])
                self.uses = sum((R(o) for o in ops[1:]), [])
                if "saveexec" in op:
                    self.defs += [("s", "exec")]
                if op in ("s_addk_i32", "s_mulk_i32"):
                    self.uses += R(ops[0])
        else:
            raise ValueError("unknown instruction " + text)
        self.states = 1
        if op == "s_nop":
            self.states = int(ops[0]) + 1
        self.is_trans = base in TRANS
        self.is_dot = base.startswith("v_dot")
        self.is_dpp = op.endswith("_dpp")
        self.is_perml = base.startswith("v_permlane")
        self.is_rdlane = base in ("v_readfirstlane_b32", "v_readlane_b32")


def need_states(p, c):
    n = 0
    pd, cu, cd = set(p.defs), set(c.uses), set(c.defs)
    vec = lambda s: {r for r in s if r[0] in "va"}
    sca = lambda s: {r for r in s if r[0] == "s"}
    if p.cls == "valu":
        raw = vec(pd) & cu
        if raw:
            if c.cls == "mfma":
                n = max(n, 2)
            if c.is_dpp or c.is_perml:
                n = max(n, 2)
            if c.is_rdlane:
                n = max(n, 1)
            if p.is_trans and c.cls in ("valu",) and not c.is_trans:
                n = max(n, 1)
            if p.is_trans and c.cls != "valu":
                n = max(n, 1)
            if ("op_sel" in p.mods or p.op.endswith("_sdwa")) and c.cls == "valu":
                n = max(n, 1)
        if p.is_dot and (vec(pd) & (cu | cd)):
            if c.base == p.base and not (vec(pd) & set(sum((regs_of(o) for o in c.ops[1:3]), []))):
                pass
            else:
                n = max(n, 3)
        sraw = sca(pd) & cu
        if sraw:
            if c.cls == "vmem":
                n = max(n, 5)
            if c.cls == "valu":
                n = max(n, 4 if c.base in ("v_readlane_b32", "v_writelane_b32") else 2)
            if c.cls in ("salu", "smem"):
                n = max(n, 1)
        if ("s", "exec") in pd:
            if c.is_dpp:
                n = max(n, 5)
            if c.cls == "mfma" or c.is_rdlane or c.is_perml:
                n = max(n, 4)
        if (("s", "vcc_lo") in pd) and c.op in ("s_cbranch_vccz", "s_cbranch_vccnz"):
            n = max(n, 1)
    if p.cls == "mfma":
        big = {8: 12, 4: 8}[p.passes]
        if c.cls == "mfma":
            if pd & (set(c.mf_a) | set(c.mf_b)):
                n = max(n, big)
            if pd & set(c.mf_c):
                if not (c.mf_c == p.defs and c.passes == p.passes):
                    n = max(n, {8: 10, 4: 6}[p.passes])
            elif pd & cd:
                n = max(n, {8: 10, 4: 6}[p.passes])
        else:
            if pd & (cu | cd):
                n = max(n, big)
            if c.cls == "valu" and set(p.mf_c) & cd:
                n = max(n, {8: 7, 4: 3}[p.passes])
    if p.cls == "salu" and ("s", "m0") in pd and ("s", "m0") in cu and c.cls == "vmem":
        n = max(n, 1)
    if p.store_data and set(p.store_data) & cd:
        n = max(n, 2)
    return n


class Kern:
    def __init__(self):
        self.out = []
        self.hist = []
        self.vm = []
        self.lg = []
        self.nid = 0
        self.nops = 0
        self.maxv = -1
        self.maxa = -1
        self.maxs = -1

    def raw(self, text):
        self.out.append(text)

    def comment(self, text):
        self.out.append("    ; " + text)

    def _append(self, ins):
        self.out.append("    " + ins.text)
        self.hist.append(ins)
        if len(self.hist) > 24:
            self.hist.pop(0)
        for r in ins.defs + ins.uses:
            if isinstance(r[1], int):
                if r[0] == "v":
                    self.maxv = max(self.maxv, r[1])
                    assert r[1] < 256, ins.text
                elif r[0] == "a":
                    self.maxa = max(self.maxa, r[1])
                    assert r[1] < 256, ins.text
                else:
                    self.maxs = max(self.maxs, r[1])
                    assert r[1] < 102, ins.text

    def _apply_wait(self, vm=None, lg=None):
        if vm is not None and len(self.vm) > vm:
            self.vm = self.vm[len(self.vm) - vm:] if vm else []
        if lg is not None and len(self.lg) > lg:
            if lg and any(o["smem"] for o in self.lg):
                return
            self.lg = self.lg[len(self.lg) - lg:] if lg else []

    def waitcnt(self, vm=None, lg=None):
        parts = []
        if vm is not None:
            assert vm <= 63
            parts.append(f"vmcnt({vm})")
        if lg is not None:
            assert lg <= 15
            parts.append(f"lgkmcnt({lg})")
        if not parts:
            return
        self._append(Ins("s_waitcnt " + " ".join(parts)))
        self._apply_wait(vm, lg)

    def wait_ids(self, ids):
        if not isinstance(ids, (list, tuple, set)):
            ids = [ids]
        ids = set(ids)
        vm = lg = None
        for i, o in enumerate(self.vm):
            if o["id"] in ids:
                vm = len(self.vm) - 1 - i
        for i, o in enumerate(self.lg):
            if o["id"] in ids:
                lg = len(self.lg) - 1 - i
        if lg is not None and any(o["smem"] for o in self.lg):
            lg = 0
        if vm is not None:
            vm = min(vm, 62)
        if lg is not None:
            lg = min(lg, 14)
        self.waitcnt(vm, lg)

    def I(self, text):
        ins = Ins(text)
        if ins.op == "s_waitcnt":
            m = re.search(r"vmcnt\((\d+)\)", text)
            m2 = re.search(r"lgkmcnt\((\d+)\)", text)
            self.waitcnt(int(m.group(1)) if m else None, int(m2.group(1)) if m2 else None)
            return None
        touched = set(ins.uses) | set(ins.defs)
        ids = [o["id"] for o in self.vm + self.lg if touched & o["defs"]]
        if ids:
            self.wait_ids(ids)
        dist = 0
        need = 0
        for p in reversed(self.hist):
            n = need_states(p, ins)
            if n > dist:
                need = max(need, n - dist)
            dist += p.states
            if dist >= 20:
                break
        while need > 0:
            k = min(need, 16)
            self._append(Ins(f"s_nop {k - 1}"))
            self.nops += 1
            need -= k
        self._append(ins)
        if ins.cls == "vmem":
            self.nid += 1
            self.vm.append(dict(id=self.nid, defs=set(ins.defs)))
            return self.nid
        if ins.cls in ("ds", "smem"):
            self.nid += 1
            self.lg.append(dict(id=self.nid, defs=set(ins.defs), smem=ins.cls == "smem"))
            return self.nid
        return None

    def __call__(self, text):
        last = None
        for line in text.split("\n"):
            line = line.strip()
            if line and not line.startswith(";"):
                last = self.I(line)
        return last

    def label(self, name):
        self.out.append(name + ":")

    def pad(self, n=16):
        self._append(Ins(f"s_nop {n - 1}"))

    def snapshot(self):
        return ([dict(o) for o in self.vm], [dict(o) for o in self.lg], list(self.hist))

    def restore(self, snap):
        self.vm, self.lg, self.hist = [dict(o) for o in snap[0]], [dict(o) for o in snap[1]], list(snap[2])

    def barrier(self):
        self.I("s_barrier")

    def text(self):
        return "\n".join(self.out)


def v(i, n=1):
    return f"v{i}" if n == 1 else f"v[{i}:{i + n - 1}]"


def a(i, n=1):
    return f"a{i}" if n == 1 else f"a[{i}:{i + n - 1}]"


def s(i, n=1):
    return f"s{i}" if n == 1 else f"s[{i}:{i + n - 1}]"


def f32(x):
    import struct
    return "0x%08x" % struct.unpack("<I", struct.pack("<f", x))[0]
```

```python
import sys
from dsl import *

NAME = "adaLN_cond__spectral_fnet__glu_gated_glu__prompt"
S_, D_, F_ = 2048, 448, 1792
WS_Y = 0x000000
WS_RP = 0x200000
WS_MODF = 0x280000
WS_MODB = 0x282000
WS_SAH = 0x284000
WS_XS = 0x300000
WS_ST = 0x500000
WS_HM = 0x600000
WS_X1 = 0xE00000
WS_SIZE = 0x10000000
KA = dict(x=0, wg=48, wu=56, wd=64, c=72, wm=80, out=88, dbg=96, ws=104)
SZ = dict(x=S_ * D_ * 2, wg=D_ * F_ * 2, wu=D_ * F_ * 2, wd=D_ * F_ * 2, c=D_ * 2, wm=D_ * 6 * D_ * 2,
          out=S_ * D_ * 2, dbg=256, ws=WS_SIZE)
MF = "v_mfma_f32_32x32x16_bf16"
MFH = "v_mfma_f32_32x32x16_f16"


def srd_load(k, base, name):
    k(f"s_load_dwordx2 {s(base, 2)}, s[0:1], {KA[name]}")


def srd_fin(k, base, name):
    k(f"s_mov_b32 {s(base + 2)}, {SZ[name]}")
    k(f"s_mov_b32 {s(base + 3)}, 0x00020000")


def role(k, sq, sr):
    k(f"""
    s_lshr_b32 {s(sr)}, s2, 3
    s_mul_i32 {s(sq)}, {s(sr)}, 37
    s_lshr_b32 {s(sq)}, {s(sq)}, 8
    s_mul_i32 s3, {s(sq)}, 7
    s_sub_u32 {s(sr)}, {s(sr)}, s3
    s_and_b32 s3, s2, 7
    s_lshl_b32 s3, s3, 2
    s_add_u32 {s(sq)}, {s(sq)}, s3
    """)


def wave_id(k, sw, vt):
    k(f"v_lshrrev_b32 {v(vt)}, 6, v0")
    k(f"v_readfirstlane_b32 {s(sw)}, {v(vt)}")


def tr_addr(k, vd, vl, vt):
    k(f"""
    v_lshrrev_b32 {v(vd)}, 5, {v(vl)}
    v_lshlrev_b32 {v(vd)}, 8, {v(vd)}
    v_bfe_u32 {v(vt)}, {v(vl)}, 2, 2
    v_lshl_add_u32 {v(vd)}, {v(vt)}, 6, {v(vd)}
    v_bfe_u32 {v(vt)}, {v(vl)}, 4, 1
    v_lshl_add_u32 {v(vd)}, {v(vt)}, 5, {v(vd)}
    v_and_b32 {v(vt)}, 3, {v(vl)}
    v_lshl_add_u32 {v(vd)}, {v(vt)}, 3, {v(vd)}
    """)


def tr_read(k, dst, vaddr, off):
    k(f"ds_read_b64_tr_b16 {dst(0)}, {v(vaddr)} offset:{off}")
    return k(f"ds_read_b64_tr_b16 {dst(2)}, {v(vaddr)} offset:{off + 512}")


def dma(k, vaddr, srd, soff, lds, imm=0, sc1=False):
    if lds is not None:
        k(f"s_mov_b32 m0, {lds}")
    return k(f"buffer_load_dwordx4 {v(vaddr)}, {s(srd, 4)}, {soff} offen" + (f" offset:{imm}" if imm else "") + (" sc1" if sc1 else "") + " lds")


def round_bf16(k, vd, vs):
    k(f"v_cvt_pk_bf16_f32 {v(vd)}, {v(vs)}, {v(vs)}")
    k(f"v_and_b32 {v(vd)}, 0xffff0000, {v(vd)}")


def gen_k1():
    k = Kern()
    SX, SWS, SWM, SC = 4, 8, 12, 16
    sS1, sC, sW = 20, 21, 22
    k("s_cmp_ge_u32 s2, 252")
    k("s_cbranch_scc1 K1_END")
    srd_load(k, SX, "x")
    srd_load(k, SWS, "ws")
    srd_load(k, SWM, "wm")
    srd_load(k, SC, "c")
    for b, n in ((SX, "x"), (SWS, "ws"), (SWM, "wm"), (SC, "c")):
        srd_fin(k, b, n)
    wave_id(k, sW, 1)
    k("v_and_b32 v1, 63, v0")
    k("s_cmp_ge_u32 s2, 224")
    k("s_cbranch_scc1 K1_HELP")
    snap = k.snapshot()
    role(k, sS1, sC)
    so = 24
    k(f"s_mul_i32 s3, {s(sS1)}, 896")
    k(f"s_mov_b32 s23, {s(sC)}")
    for i in range(7):
        k(f"s_lshl_b32 {s(so + i)}, s23, 7")
        k(f"s_add_u32 {s(so + i)}, {s(so + i)}, s3")
        if i < 6:
            k("s_add_u32 s23, s23, 1")
            k("s_cmp_eq_u32 s23, 7")
            k("s_cselect_b32 s23, 0, s23")
    k(f"""
    v_lshrrev_b32 v2, 3, v1
    v_lshl_add_u32 v2, {s(sW)}, 4, v2
    v_mul_u32_u24 v3, 28672, v2
    v_and_b32 v4, 7, v1
    v_lshl_add_u32 v3, v4, 4, v3
    v_add_u32 v5, 229376, v3
    """)
    X = 16
    for kk in range(7):
        for i in range(2):
            k(f"buffer_load_dwordx4 {v(X + (i * 7 + kk) * 4, 4)}, {v(3 if i == 0 else 5)}, {s(SX, 4)}, {s(so + kk)} offen")
    FB = 72
    k(f"""
    v_and_b32 v6, 31, v1
    v_cmp_eq_u32 vcc, 0, v6
    s_lshr_b32 s3, {s(sW)}, 1
    s_lshl_b32 s23, s3, 5
    s_lshl_b32 s3, s3, 4
    v_mov_b32 v7, s23
    v_mov_b32 v8, s3
    v_cndmask_b32 v7, v6, v7, vcc
    v_cndmask_b32 v8, v8, 0, vcc
    v_cvt_f32_u32 v7, v7
    v_cvt_f32_u32 v8, v8
    v_mul_f32 v7, {f32(1 / 64)}, v7
    v_mul_f32 v8, {f32(1 / 64)}, v8
    v_lshrrev_b32 v9, 5, v1
    v_lshlrev_b32 v9, 2, v9
    v_cvt_f32_u32 v9, v9
    v_fmac_f32 v8, v9, v7
    """)
    for ks in range(4):
        for pr in range(4):
            for e in range(2):
                n = pr * 2 + e
                s2 = 16 * ks + (n & 3) + 8 * (n >> 2)
                k(f"v_fmamk_f32 {v(10 + e)}, v7, {f32(float(s2))}, v8")
            k("v_cos_f32 v10, v10")
            k("v_cos_f32 v11, v11")
            k(f"v_cvt_pk_f16_f32 {v(FB + ks * 4 + pr)}, v10, v11")
    ZB, OB = 0, 8192
    k(f"""
    v_and_b32 v9, 3, v1
    v_lshlrev_b32 v9, 4, v9
    v_lshl_add_u32 v9, v2, 6, v9
    v_bfe_u32 v10, v1, 2, 1
    v_lshl_add_u32 v9, v10, 12, v9
    """)
    tr_addr(k, 12, 1, 10)
    k(f"s_and_b32 s3, {s(sW)}, 1")
    k("s_lshl_b32 s23, s3, 12")
    k("v_add_u32 v12, s23, v12")
    k(f"""
    s_lshl_b32 s3, s3, 2
    s_lshr_b32 s23, {s(sS1)}, 1
    s_and_b32 s23, s23, 7
    s_xor_b32 s3, s3, s23
    v_lshrrev_b32 v13, 5, v1
    v_xor_b32 v13, s3, v13
    v_and_b32 v10, 7, v1
    v_xor_b32 v13, v13, v10
    v_xor_b32 v14, 2, v13
    s_lshr_b32 s3, {s(sW)}, 1
    s_lshl_b32 s3, s3, 5
    v_add_u32 v10, s3, v6
    v_lshlrev_b32 v10, 7, v10
    v_lshl_add_u32 v13, v13, 4, v10
    v_lshl_add_u32 v14, v14, 4, v10
    """)
    k(f"""
    v_lshrrev_b32 v10, 3, v0
    v_and_b32 v11, 7, v10
    v_xor_b32 v11, v11, v4
    v_lshlrev_b32 v11, 4, v11
    v_lshl_add_u32 v15, v10, 7, v11
    v_mul_u32_u24 v10, 57344, v10
    v_lshl_add_u32 v6, v4, 4, v10
    s_lshl_b32 s3, {s(sC)}, 13
    s_lshl_b32 s23, {s(sS1)}, 7
    s_add_u32 s23, s23, s3
    s_add_u32 s31, s23, 4096
    """)
    ST = 88
    for i in range(4):
        k(f"v_mov_b32 {v(ST + i)}, 0")
    k("s_mov_b32 s3, 0x3f803f80")
    for kk in range(7):
        for dw in range(4):
            for i in range(2):
                r = X + (i * 7 + kk) * 4 + dw
                k(f"v_dot2c_f32_bf16 {v(ST + 2 * i)}, s3, {v(r)}")
                k(f"v_dot2c_f32_bf16 {v(ST + 2 * i + 1)}, {v(r)}, {v(r)}")
    for mod in ("quad_perm:[1,0,3,2]", "quad_perm:[2,3,0,1]", "row_half_mirror"):
        for i in range(4):
            k(f"v_add_f32_dpp {v(ST + i)}, {v(ST + i)}, {v(ST + i)} {mod} row_mask:0xf bank_mask:0xf")
    for i in range(2):
        su, sq = ST + 2 * i, ST + 2 * i + 1
        k(f"""
        v_mul_f32 {v(su)}, {f32(1 / 448)}, {v(su)}
        v_mul_f32 {v(sq)}, {f32(1 / 448)}, {v(sq)}
        v_fma_f32 {v(sq)}, -{v(su)}, {v(su)}, {v(sq)}
        v_max_f32 {v(sq)}, 0, {v(sq)}
        v_add_f32 {v(sq)}, {f32(1e-5)}, {v(sq)}
        v_rsq_f32 {v(sq)}, {v(sq)}
        v_mul_f32 {v(su)}, {v(su)}, {v(sq)}
        """)
    for i in range(2):
        su, sq = ST + 2 * i, ST + 2 * i + 1
        for dw in range(4):
            r = X + (i * 7) * 4 + dw
            k(f"""
            v_lshlrev_b32 v10, 16, {v(r)}
            v_and_b32 v11, 0xffff0000, {v(r)}
            v_fma_f32 v10, v10, {v(sq)}, -{v(su)}
            v_fma_f32 v11, v11, {v(sq)}, -{v(su)}
            v_cvt_pk_f16_f32 {v(r)}, v10, v11
            """)
        k(f"ds_write_b128 v9, {v(X + i * 28, 4)} offset:{ZB + i * 512}")
    k.waitcnt(lg=0)
    k.barrier()
    AF = 92
    ACC = 108
    for ks in range(4):
        tr_read(k, lambda o: v(AF + ks * 4 + o, 2), 12, ZB + ks * 1024)
    for ks in range(4):
        k(f"{MFH} {v(ACC, 16)}, {v(AF + ks * 4, 4)}, {v(FB + ks * 4, 4)}, " + (v(ACC, 16) if ks else "0"))
    for p in range(2):
        for m in range(4):
            k(f"v_cvt_pk_bf16_f32 {v(AF + p * 4 + m)}, {v(ACC + 4 * m + p)}, {v(ACC + 4 * m + 2 + p)}")
    k(f"ds_write_b128 v13, {v(AF, 4)} offset:{OB}")
    k(f"ds_write_b128 v14, {v(AF + 4, 4)} offset:{OB}")
    k.waitcnt(lg=0)
    k.barrier()
    k(f"ds_read_b128 {v(AF + 8, 4)}, v15 offset:{OB}")
    k(f"ds_read_b128 {v(AF + 12, 4)}, v15 offset:{OB + 4096}")
    k(f"buffer_store_dwordx4 {v(AF + 8, 4)}, v6, {s(SWS, 4)}, s23 offen")
    k(f"buffer_store_dwordx4 {v(AF + 12, 4)}, v6, {s(SWS, 4)}, s31 offen")
    k("s_endpgm")

    k.label("K1_HELP")
    k.restore(snap)
    sH, sWD, sTB = 20, 21, 23
    PR, SE, SB, RED, BC = 4096, 32768, 0, 1024, 2048
    k(f"""
    s_sub_u32 {s(sH)}, s2, 224
    s_cmp_ge_u32 {s(sH)}, 14
    s_cselect_b32 {s(sTB)}, 1, 0
    s_cselect_b32 s3, 14, 0
    s_sub_u32 {s(sWD)}, {s(sH)}, s3
    v_lshlrev_b32 v2, 2, v0
    """)
    k(f"buffer_load_dword v3, v2, {s(SC, 4)}, 0 offen")
    k(f"""
    v_lshrrev_b32 v4, 2, v1
    s_mul_i32 s3, {s(sW)}, 112
    v_add_u32 v4, s3, v4
    v_mul_u32_u24 v4, 5376, v4
    v_and_b32 v5, 3, v1
    v_lshl_add_u32 v4, v5, 4, v4
    s_lshl_b32 s24, {s(sWD)}, 6
    s_cmp_eq_u32 {s(sTB)}, 0
    s_cselect_b32 s3, 896, 0
    s_add_u32 s24, s24, s3
    s_mul_i32 s25, {s(sW)}, 7168
    """)
    ids_p = []
    for i in range(7):
        k(f"s_add_u32 s26, s25, {PR + i * 1024}")
        ids_p.append(dma(k, 4, SWM, "s24", "s26"))
        k(f"s_add_u32 s24, s24, {16 * 5376}")
    k(f"""
    s_lshl_b32 s24, {s(sH)}, 7
    s_add_u32 s24, s24, 1792
    s_lshl_b32 s27, s25, 1
    """)
    ids_s = []
    for i in range(7):
        for j in range(2):
            k(f"s_add_u32 s26, s27, {SE + (i * 2 + j) * 1024}")
            ids_s.append(dma(k, 4, SWM, "s24", "s26"))
            k(f"s_add_u32 s24, s24, {64 if j == 0 else 16 * 5376 - 64}")
    k(f"""
    v_and_b32 v6, 0xf9, v0
    v_bfe_u32 v7, v0, 1, 1
    v_lshl_add_u32 v6, v7, 2, v6
    v_bfe_u32 v7, v0, 2, 1
    v_lshl_add_u32 v6, v7, 1, v6
    v_lshlrev_b32 v6, 2, v6
    v_lshlrev_b32 v7, 16, v3
    v_and_b32 v8, 0xffff0000, v3
    v_mul_f32 v9, {f32(-1.4426950408889634)}, v7
    v_mul_f32 v10, {f32(-1.4426950408889634)}, v8
    v_exp_f32 v9, v9
    v_exp_f32 v10, v10
    v_add_f32 v9, 1.0, v9
    v_add_f32 v10, 1.0, v10
    v_rcp_f32 v9, v9
    v_rcp_f32 v10, v10
    v_mul_f32 v7, v7, v9
    v_mul_f32 v8, v8, v10
    v_cvt_pk_bf16_f32 v7, v7, v8
    ds_write_b32 v6, v7 offset:{SB}
    """)
    tr_addr(k, 12, 1, 10)
    TG = 64
    k(f"s_cmp_eq_u32 {s(sTB)}, 1")
    k("s_cbranch_scc1 K1_TRB")
    sn2 = k.snapshot()
    k(f"""
    v_lshrrev_b32 v8, 5, v1
    v_lshlrev_b32 v8, 2, v8
    s_lshl_b32 s3, {s(sWD)}, 5
    s_and_b32 s26, {s(sW)}, 1
    s_add_u32 s3, s3, s26
    v_add_u32 v8, s3, v8
    v_cvt_f32_u32 v8, v8
    v_and_b32 v9, 31, v1
    v_cvt_f32_u32 v9, v9
    s_lshr_b32 s26, {s(sW)}, 1
    s_mul_i32 s26, s26, 0x3e800000
    v_mov_b32 v14, s26
    """)
    for n in range(8):
        dn = 2 * (n & 1) + 8 * (n >> 1)
        k(f"""
        v_add_f32 v10, {f32(float(dn))}, v8
        v_mul_f32 v11, v10, v9
        v_fmamk_f32 v11, v11, {f32(1 / 448)}, v14
        v_mul_f32 v10, {f32(1 / 14)}, v10
        v_fract_f32 v10, v10
        """)
        for j in range(7):
            r = TG + j * 8 + n
            if j == 0:
                k(f"v_cos_f32 {v(r)}, v11")
            else:
                k(f"v_fmamk_f32 {v(r)}, v10, {f32(float(j))}, v11")
                k(f"v_cos_f32 {v(r)}, {v(r)}")
    k("s_branch K1_TRD")
    k.label("K1_TRB")
    k.restore(sn2)
    k(f"""
    v_cvt_f32_u32 v8, v0
    v_cvt_f32_u32 v9, {s(sWD)}
    v_mul_f32 v9, v9, v8
    v_mul_f32 v9, {f32(1 / 14)}, v9
    v_fract_f32 v9, v9
    v_mul_f32 v8, {f32(1 / 448)}, v8
    """)
    for i in range(32):
        k(f"v_fmamk_f32 {v(TG + i)}, v8, {f32(float(i))}, v9")
        k(f"v_cos_f32 {v(TG + i)}, {v(TG + i)}")
    k.label("K1_TRD")
    k.waitcnt(lg=0)
    k.barrier()
    SF = 16
    k(f"""
    v_lshrrev_b32 v8, 5, v1
    v_lshlrev_b32 v8, 4, v8
    s_mul_i32 s3, {s(sW)}, 224
    v_add_u32 v8, s3, v8
    v_add_u32 v13, s25, v12
    """)
    for i in range(7):
        k(f"ds_read_b128 {v(SF + i * 4, 4)}, v8 offset:{SB + i * 32}")
    k.wait_ids(ids_p)
    WF = 120
    ACC = 176
    for i in range(7):
        tr_read(k, lambda o: v(WF + i * 4 + o, 2), 13, PR + i * 1024)
    for i in range(7):
        k(f"{MF} {v(ACC, 16)}, {v(SF + i * 4, 4)}, {v(WF + i * 4, 4)}, " + (v(ACC, 16) if i else "0"))
    k(f"""
    v_and_b32 v9, 31, v1
    v_lshlrev_b32 v9, 2, v9
    s_lshl_b32 s3, {s(sW)}, 7
    v_add_u32 v10, s3, v9
    ds_write_b32 v10, {v(ACC)} offset:{RED}
    """)
    k.waitcnt(lg=0)
    k.barrier()
    for i in range(4):
        k(f"ds_read_b32 {v(44 + i)}, v9 offset:{RED + i * 128}")
    k("v_add_f32 v44, v44, v45")
    k("v_add_f32 v46, v46, v47")
    k("v_add_f32 v44, v44, v46")
    round_bf16(k, 44, 44)
    k(f"s_cmp_eq_u32 {s(sTB)}, 1")
    k("s_cselect_b32 s3, 0, 1.0")
    k("v_add_f32 v44, s3, v44")
    round_bf16(k, 44, 44)
    k(f"ds_write_b32 v10, v44 offset:{BC}")
    k.waitcnt(lg=0)
    k("s_cbranch_scc1 K1_FB")
    sn3 = k.snapshot()
    k(f"""
    v_lshrrev_b32 v8, 5, v1
    v_lshlrev_b32 v8, 4, v8
    s_and_b32 s26, {s(sW)}, 1
    s_lshl_b32 s26, s26, 2
    s_lshl_b32 s3, {s(sW)}, 7
    s_add_u32 s3, s3, s26
    s_add_u32 s3, s3, {BC}
    v_add_u32 v8, s3, v8
    """)
    for m in range(4):
        k(f"ds_read2_b32 {v(48 + 2 * m, 2)}, v8 offset0:{8 * m} offset1:{8 * m + 2}")
    k(f"""
    v_lshlrev_b32 v9, 4, v1
    s_mul_i32 s3, {s(sW)}, 14
    s_add_u32 s3, s3, {s(sWD)}
    s_lshl_b32 s3, s3, 10
    s_add_u32 s3, s3, {WS_RP}
    """)
    for j in range(7):
        for n in range(8):
            k(f"v_mul_f32 {v(TG + j * 8 + n)}, {v(TG + j * 8 + n)}, {v(48 + n)}")
        for m in range(4):
            k(f"v_cvt_pk_bf16_f32 {v(TG + j * 8 + m)}, {v(TG + j * 8 + 2 * m)}, {v(TG + j * 8 + 2 * m + 1)}")
        k(f"buffer_store_dwordx4 {v(TG + j * 8, 4)}, v9, {s(SWS, 4)}, s3 offen")
        k(f"s_add_u32 s3, s3, {56 * 1024}")
    k.wait_ids(ids_s)
    k("s_branch K1_FD")
    k.label("K1_FB")
    k.restore(sn3)
    k(f"s_lshl_b32 s3, {s(sW)}, 7")
    k(f"v_mov_b32 v8, s3")
    SA = 96
    for m in range(8):
        k(f"ds_read_b128 {v(192 + 4 * m, 4)}, v8 offset:{BC + 16 * m}")
    k(f"v_mul_f32 v10, {v(TG)}, v192")
    k(f"v_mul_f32 v11, {v(TG + 1)}, v193")
    for i in range(2, 32):
        k(f"v_fmac_f32 {v(10 + (i & 1))}, {v(TG + i)}, {v(192 + i)}")
    k(f"""
    v_add_f32 v14, v10, v11
    v_sub_f32 v15, v10, v11
    s_mul_i32 s3, {s(sWD)}, 1792
    s_add_u32 s3, s3, {WS_SAH}
    v_cmp_gt_u32 vcc, 224, v0
    v_cndmask_b32 v9, -1, v2, vcc
    v_and_b32 v9, 0x7ffffffc, v9
    """)
    k(f"buffer_store_dword v14, v9, {s(SWS, 4)}, s3 offen")
    k(f"buffer_store_dword v15, v9, {s(SWS, 4)}, s3 offen offset:896")
    k.wait_ids(ids_s)
    k.label("K1_FD")
    k.vm = []
    k("v_add_u32 v13, s27, v12")
    for i in range(14):
        tr_read(k, lambda o: v(WF + i * 4 + o, 2), 13, SE + i * 1024)
    for i in range(7):
        for j in range(2):
            k(f"{MF} {v(ACC + 16 * j, 16)}, {v(SF + i * 4, 4)}, {v(WF + (i * 2 + j) * 4, 4)}, " + (v(ACC + 16 * j, 16) if i else "0"))
    k(f"""
    v_cmp_gt_u32 vcc, 32, v1
    v_cndmask_b32 v44, {v(ACC + 16)}, {v(ACC)}, vcc
    ds_write_b32 v2, v44 offset:{SB}
    """)
    k.waitcnt(lg=0)
    k.barrier()
    k(f"s_cmp_lg_u32 {s(sW)}, 0")
    k("s_cbranch_scc1 K1_END")
    for i in range(4):
        k(f"ds_read_b32 {v(44 + i)}, v2 offset:{SB + i * 256}")
    k("v_add_f32 v44, v44, v45")
    k("v_add_f32 v46, v46, v47")
    k("v_add_f32 v44, v44, v46")
    round_bf16(k, 44, 44)
    k(f"""
    s_sub_u32 s3, {s(sH)}, 14
    s_cmp_lt_u32 s3, 7
    s_cselect_b32 s3, 1.0, 0
    v_add_f32 v44, s3, v44
    """)
    round_bf16(k, 44, 44)
    k(f"""
    s_lshl_b32 s3, {s(sH)}, 8
    s_add_u32 s3, s3, {WS_MODF}
    buffer_store_dword v44, v2, {s(SWS, 4)}, s3 offen
    v_and_b32 v6, 0x33, v1
    v_bfe_u32 v7, v1, 2, 1
    v_lshl_add_u32 v6, v7, 3, v6
    v_bfe_u32 v7, v1, 3, 1
    v_lshl_add_u32 v6, v7, 2, v6
    v_lshlrev_b32 v6, 1, v6
    s_lshl_b32 s3, {s(sH)}, 7
    s_add_u32 s3, s3, {WS_MODB}
    buffer_store_short_d16_hi v44, v6, {s(SWS, 4)}, s3 offen
    """)
    k.label("K1_END")
    k("s_endpgm")
    return k, 90112


def gen_k2():
    k = Kern()
    SX, SWS = 4, 8
    sG, sJ, sW = 20, 21, 22
    YB, VB, DCB = 0, 57344, 57344 + 16384
    k("s_cmp_ge_u32 s2, 224")
    k("s_cbranch_scc1 K2_END")
    srd_load(k, SX, "x")
    srd_load(k, SWS, "ws")
    srd_fin(k, SX, "x")
    srd_fin(k, SWS, "ws")
    wave_id(k, sW, 1)
    k("v_and_b32 v1, 63, v0")
    role(k, sG, sJ)
    k("v_lshlrev_b32 v2, 4, v1")
    k(f"""
    s_mul_i32 s24, {s(sG)}, 57344
    s_mul_i32 s25, {s(sW)}, 14336
    s_add_u32 s24, s24, s25
    """)
    idsY = []
    for i in range(14):
        if i % 4 == 0:
            k(f"s_mov_b32 m0, s25")
        idsY.append(dma(k, 2, SWS, "s24", None, imm=(i % 4) * 1024))
        if i % 4 == 3:
            k("s_add_u32 s24, s24, 4096")
            k("s_add_u32 s25, s25, 4096")
    RF = 16
    k(f"""
    s_lshl_b32 s24, {s(sJ)}, 2
    s_add_u32 s24, s24, {s(sW)}
    s_mul_i32 s24, s24, 14336
    s_add_u32 s24, s24, {WS_RP}
    """)
    for i in range(14):
        k(f"buffer_load_dwordx4 {v(RF + i * 4, 4)}, v2, {s(SWS, 4)}, s24 offen" + (f" offset:{(i % 4) * 1024}" if i % 4 else ""))
        if i % 4 == 3:
            k("s_add_u32 s24, s24, 4096")
    sTB, sEB = 26, 27
    k(f"""
    s_sub_u32 s3, 64, {s(sG)}
    s_cmp_eq_u32 {s(sG)}, 0
    s_cselect_b32 s3, 32, s3
    s_cmp_ge_u32 {s(sW)}, 2
    s_cselect_b32 {s(sTB)}, s3, {s(sG)}
    s_and_b32 s3, {s(sW)}, 1
    s_mul_i32 s3, s3, 224
    s_lshl_b32 {s(sEB)}, {s(sJ)}, 5
    s_add_u32 {s(sEB)}, {s(sEB)}, s3
    v_and_b32 v3, 31, v1
    v_lshrrev_b32 v4, 5, v1
    v_lshl_add_u32 v5, v3, 6, {s(sTB)}
    v_mul_u32_u24 v6, 896, v5
    v_lshl_add_u32 v6, v4, 3, v6
    s_lshl_b32 s3, {s(sEB)}, 1
    """)
    XT = 72
    for m in range(4):
        k(f"buffer_load_dwordx2 {v(XT + 2 * m, 2)}, v6, {s(SX, 4)}, s3 offen" + (f" offset:{16 * m}" if m else ""))
    GA, CB = 80, 96
    k(f"""
    v_lshlrev_b32 v7, 4, v4
    s_lshl_b32 s3, {s(sEB)}, 2
    s_add_u32 s3, s3, {WS_MODF}
    """)
    for m in range(4):
        k(f"buffer_load_dwordx4 {v(GA + 4 * m, 4)}, v7, {s(SWS, 4)}, s3 offen" + (f" offset:{32 * m}" if m else ""))
    for m in range(4):
        k(f"buffer_load_dwordx4 {v(CB + 4 * m, 4)}, v7, {s(SWS, 4)}, s3 offen offset:{3584 + 32 * m}")
    TA0, TB0, TA1, TB1 = 112, 120, 128, 136
    k(f"""
    v_cvt_f32_u32 v8, v5
    v_mul_f32 v8, {f32(1 / 2048)}, v8
    v_lshlrev_b32 v9, 2, v4
    v_cvt_f32_u32 v9, v9
    v_mul_f32 v9, v9, v8
    """)
    for q in range(2):
        for pr in range(4):
            for e in range(2):
                n = pr * 2 + e
                s1 = 16 * q + (n & 3) + 8 * (n >> 2)
                k(f"v_fmamk_f32 {v(10 + e)}, v8, {f32(float(s1))}, v9")
            k("v_cos_f32 v12, v10")
            k("v_cos_f32 v13, v11")
            k("v_sin_f32 v10, v10")
            k("v_sin_f32 v11, v11")
            k(f"v_cvt_pk_bf16_f32 {v(TA0 + q * 4 + pr)}, v12, v13")
            k(f"v_cvt_pk_bf16_f32 {v(TB0 + q * 4 + pr)}, v10, v11")
    k(f"s_cmp_eq_u32 {s(sG)}, 0")
    k("s_cbranch_scc1 K2_T0")
    sn = k.snapshot()
    k(f"""
    s_cmp_ge_u32 {s(sW)}, 2
    s_cselect_b32 s3, 0x80008000, 0
    s_cselect_b32 s23, 0, 0x80008000
    """)
    for i in range(8):
        k(f"v_xor_b32 {v(TA1 + i)}, s3, {v(TB0 + i)}")
        k(f"v_xor_b32 {v(TB1 + i)}, s23, {v(TA0 + i)}")
    k("s_branch K2_T1")
    k.label("K2_T0")
    k.restore(sn)
    k(f"""
    s_cmp_ge_u32 {s(sW)}, 2
    s_cselect_b32 s3, -1, 0
    s_cselect_b32 s23, 0, -1
    """)
    for i in range(8):
        k(f"v_and_b32 {v(TA1 + i)}, s3, {v(TA0 + i)}")
        k(f"v_and_b32 {v(TB1 + i)}, s3, {v(TB0 + i)}")
        k(f"v_and_b32 {v(TA0 + i)}, s23, {v(TA0 + i)}")
        k(f"v_and_b32 {v(TB0 + i)}, s23, {v(TB0 + i)}")
    k.label("K2_T1")
    k(f"""
    s_and_b32 s3, {s(sW)}, 1
    s_lshl_b32 s3, s3, 1
    v_bfe_u32 v8, v1, 1, 3
    v_xor_b32 v8, v8, v4
    v_xor_b32 v8, s3, v8
    v_xor_b32 v9, 4, v8
    v_lshlrev_b32 v10, 7, v3
    v_lshl_add_u32 v8, v8, 4, v10
    v_lshl_add_u32 v9, v9, 4, v10
    """)
    k.wait_ids(idsY)
    k.barrier()
    YF = 144
    ACC = 176
    seq = [(wd, ri) for wd in range(14) for ri in range(2)]

    def rd(i):
        wd, ri = seq[i]
        k(f"ds_read_b128 {v(YF + (i % 8) * 4, 4)}, {v(8 + (wd & 1))} offset:{YB + ((wd >> 1) * 2 + ri) * 4096}")
    for i in range(6):
        rd(i)
    for i in range(28):
        wd, ri = seq[i]
        k(f"{MF} {v(ACC + 16 * ri, 16)}, {v(YF + (i % 8) * 4, 4)}, {v(RF + wd * 4, 4)}, " + (v(ACC + 16 * ri, 16) if wd else "0"))
        if i + 6 < 28:
            rd(i + 6)
    k(f"s_lshl_b32 s3, {s(sW)}, 12")
    k(f"v_add_u32 v11, {VB}, v2")
    k("v_add_u32 v10, s3, v11")
    for ri in range(2):
        for m in range(8):
            k(f"v_cvt_pk_bf16_f32 {v(RF + ri * 8 + m)}, {v(ACC + 16 * ri + 2 * m)}, {v(ACC + 16 * ri + 2 * m + 1)}")
        for q in range(2):
            k(f"ds_write_b128 v10, {v(RF + ri * 8 + q * 4, 4)} offset:{(ri * 2 + q) * 1024}")
    k.waitcnt(lg=0)
    k.barrier()
    VF = 208
    order = [(ab, p, ri, q) for ab in range(2) for ri in range(2) for q in range(2) for p in range(2)]
    dst = lambda i: (YF + i * 4) if i < 8 else (VF + (i - 8) * 4)
    for i, (ab, p, ri, q) in enumerate(order):
        k(f"ds_read_b128 {v(dst(i), 4)}, v11 offset:{((ab * 2 + p) * 4 + ri * 2 + q) * 1024}")
    for i, (ab, p, ri, q) in enumerate(order):
        T = {(0, 0): TA0, (1, 0): TB0, (0, 1): TA1, (1, 1): TB1}[(ab, ri)] + q * 4
        k(f"{MF} {v(ACC + 16 * p, 16)}, {v(dst(i), 4)}, {v(T, 4)}, " + (v(ACC + 16 * p, 16) if i >= 2 else "0"))
    k(f"""
    s_and_b32 s3, {s(sW)}, 1
    s_cmp_eq_u32 s3, 0
    s_cselect_b32 s3, 1.0, -1.0
    """)
    for r in range(16):
        k(f"v_fmac_f32 {v(ACC + r)}, s3, {v(ACC + 16 + r)}")
    k(f"s_cmp_lg_u32 {s(sTB)}, 0")
    k("s_cbranch_scc1 K2_NODC")
    sn = k.snapshot()
    k(f"""
    v_mul_u32_u24 v10, {7 * 1792}, v4
    v_lshl_add_u32 v10, v3, 2, v10
    s_lshl_b32 s3, {s(sEB)}, 2
    s_add_u32 s3, s3, {WS_SAH}
    """)
    for i in range(7):
        k(f"buffer_load_dword {v(RF + i)}, v10, {s(SWS, 4)}, s3 offen")
        k("s_add_u32 s3, s3, 1792")
    for i in range(1, 7):
        k(f"v_add_f32 {v(RF)}, {v(RF)}, {v(RF + i)}")
    k(f"""
    v_mov_b32 {v(RF + 1)}, {v(RF)}
    v_permlane32_swap_b32 {v(RF)}, {v(RF + 1)}
    v_add_f32 {v(RF)}, {v(RF)}, {v(RF + 1)}
    v_mul_f32 {v(RF)}, {f32(2048.0)}, {v(RF)}
    s_lshl_b32 s3, {s(sW)}, 7
    s_add_u32 s3, s3, {DCB}
    v_lshl_add_u32 v10, v3, 2, s3
    ds_write_b32 v10, {v(RF)}
    v_lshl_add_u32 v10, v4, 4, s3
    """)
    k.waitcnt(lg=0)
    for m in range(4):
        k(f"ds_read_b128 {v(RF + 4 * m, 4)}, v10 offset:{32 * m}")
    k("v_cmp_eq_u32 vcc, 0, v3")
    k("v_cndmask_b32 v11, 0, 1.0, vcc")
    for r in range(16):
        k(f"v_fmac_f32 {v(ACC + r)}, v11, {v(RF + r)}")
    k.waitcnt(vm=0, lg=0)
    k.label("K2_NODC")
    k.restore(sn)
    X1 = ACC + 16
    for m in range(4):
        for dw in range(2):
            r = 4 * m + 2 * dw
            k(f"v_lshlrev_b32 {v(X1 + r)}, 16, {v(XT + 2 * m + dw)}")
            k(f"v_and_b32 {v(X1 + r + 1)}, 0xffff0000, {v(XT + 2 * m + dw)}")
    for r in range(16):
        k(f"v_fmac_f32 {v(X1 + r)}, {v(GA + r)}, {v(ACC + r)}")
    for r in range(16):
        k(f"v_mul_f32 {v(ACC + r)}, {v(X1 + r)}, {v(CB + r)}")
    for m in range(8):
        k(f"v_cvt_pk_bf16_f32 {v(RF + m)}, {v(ACC + 2 * m)}, {v(ACC + 2 * m + 1)}")
    k(f"""
    s_lshr_b32 s24, {s(sG)}, 1
    s_lshl_b32 s24, s24, 2
    s_and_b32 s3, {s(sG)}, 1
    s_add_u32 s24, s24, s3
    s_and_b32 s3, {s(sW)}, 2
    s_add_u32 s24, s24, s3
    s_mul_i32 s25, s24, 28672
    s_lshl_b32 s3, {s(sEB)}, 6
    s_add_u32 s25, s25, s3
    s_add_u32 s25, s25, {WS_XS}
    """)
    k(f"buffer_store_dwordx4 {v(RF, 4)}, v2, {s(SWS, 4)}, s25 offen")
    k(f"buffer_store_dwordx4 {v(RF + 4, 4)}, v2, {s(SWS, 4)}, s25 offen offset:1024")
    k(f"v_add_f32 v10, {v(X1)}, {v(X1 + 1)}")
    k(f"v_mul_f32 v11, {v(X1)}, {v(X1)}")
    k(f"v_fmac_f32 v11, {v(X1 + 1)}, {v(X1 + 1)}")
    for r in range(2, 16):
        k(f"v_add_f32 v10, v10, {v(X1 + r)}")
        k(f"v_fmac_f32 v11, {v(X1 + r)}, {v(X1 + r)}")
    k(f"""
    v_permlane32_swap_b32 v10, v11
    v_add_f32 v10, v10, v11
    s_mul_i32 s25, s24, 3584
    s_lshl_b32 s3, {s(sEB)}, 3
    s_add_u32 s25, s25, s3
    s_add_u32 s25, s25, {WS_ST}
    v_lshlrev_b32 v12, 2, v1
    buffer_store_dword v10, v12, {s(SWS, 4)}, s25 offen
    s_lshl_b32 s25, s2, 14
    s_lshl_b32 s3, {s(sW)}, 12
    s_add_u32 s25, s25, s3
    s_add_u32 s25, s25, {WS_X1}
    """)
    for m in range(4):
        k(f"buffer_store_dwordx4 {v(X1 + 4 * m, 4)}, v2, {s(SWS, 4)}, s25 offen" + (f" offset:{1024 * m}" if m else ""))
    k.label("K2_END")
    k("s_endpgm")
    return k, DCB + 512


def merge(main, fill, start=0, per=4):
    out = []
    fi = 0
    for i, m_ in enumerate(main):
        out.append(m_)
        if i >= start:
            cost = 0
            while fi < len(fill) and cost < per:
                c = 2 if any(fill[fi].startswith(t) for t in TRANS) else 1
                out.append(fill[fi])
                fi += 1
                cost += c
    out += fill[fi:]
    return out


def gen_k3():
    k = Kern()
    SWG, SWU, SWS = 4, 8, 12
    sT, sFS, sW = 20, 21, 22
    XB, MB, SB = 0, 114688, 114688 + 2048
    k("s_cmp_ge_u32 s2, 224")
    k("s_cbranch_scc1 K3_END")
    srd_load(k, SWG, "wg")
    srd_load(k, SWU, "wu")
    srd_load(k, SWS, "ws")
    srd_fin(k, SWG, "wg")
    srd_fin(k, SWU, "wu")
    srd_fin(k, SWS, "ws")
    wave_id(k, sW, 1)
    k("v_and_b32 v1, 63, v0")
    role(k, sT, sFS)
    k(f"""
    s_and_b32 s3, s2, 1
    s_mul_i32 s3, s3, 7
    s_add_u32 {s(sFS)}, {s(sFS)}, s3
    s_and_b32 s3, {s(sT)}, 3
    s_lshr_b32 {s(sT)}, {s(sT)}, 3
    s_lshl_b32 {s(sT)}, {s(sT)}, 2
    s_add_u32 {s(sT)}, {s(sT)}, s3
    v_lshlrev_b32 v2, 4, v1
    v_and_b32 v3, 31, v1
    v_lshrrev_b32 v4, 5, v1
    v_lshrrev_b32 v5, 2, v1
    v_mul_u32_u24 v5, 3584, v5
    v_and_b32 v6, 3, v1
    v_lshl_add_u32 v5, v6, 4, v5
    s_lshl_b32 s23, {s(sFS)}, 8
    s_lshl_b32 s3, {s(sW)}, 6
    s_add_u32 s23, s23, s3
    s_mul_i32 s25, {s(sW)}, 28672
    """)
    tr_addr(k, 7, 1, 6)
    k("v_add_u32 v7, s25, v7")

    def stage(srd):
        k("s_mov_b32 s24, s23")
        k("s_mov_b32 s26, s25")
        ids = []
        for i in range(28):
            ids.append(dma(k, 5, srd, "s24", "s26"))
            k(f"s_add_u32 s24, s24, {16 * 3584}")
            k("s_add_u32 s26, s26, 1024")
        return ids
    ids = stage(SWG)
    k(f"""
    s_mov_b32 s3, {WS_MODB + 896}
    v_lshlrev_b32 v8, 3, v0
    buffer_load_dwordx2 v[10:11], v8, {s(SWS, 4)}, s3 offen
    """)
    k(f"""
    s_lshl_b32 s3, {s(sT)}, 2
    s_add_u32 s3, s3, {s(sW)}
    s_mul_i32 s3, s3, 3584
    s_add_u32 s3, s3, {WS_ST}
    v_lshlrev_b32 v9, 2, v1
    """)
    for i in range(14):
        k(f"buffer_load_dword {v(16 + i)}, v9, {s(SWS, 4)}, s3 offen" + (f" offset:{256 * i}" if i else ""))
    k.wait_ids(ids)
    for i in range(28):
        tr_read(k, lambda o: a(i * 4 + o, 2), 7, i * 1024)
    k.waitcnt(lg=0)
    ids = stage(SWU)
    k(f"v_add_u32 v8, {MB}, v8")
    k(f"ds_write_b64 v8, v[10:11]")
    for i in range(1, 14):
        k(f"v_add_f32 v16, v16, {v(16 + i)}")
    k(f"""
    v_mul_f32 v16, {f32(1 / 448)}, v16
    v_mov_b32 v17, v16
    v_permlane32_swap_b32 v16, v17
    """)
    k(f"""
    v_fma_f32 v17, -v16, v16, v17
    v_max_f32 v17, 0, v17
    v_add_f32 v17, {f32(1e-5)}, v17
    v_sqrt_f32 v17, v17
    v_sub_f32 v16, 0, v16
    s_lshl_b32 s3, {s(sW)}, 8
    s_add_u32 s3, s3, {SB}
    v_lshl_add_u32 v18, v3, 3, s3
    ds_write_b64 v18, v[16:17]
    """)
    k.wait_ids(ids)
    for i in range(28):
        tr_read(k, lambda o: a(112 + i * 4 + o, 2), 7, i * 1024)
    k.waitcnt(lg=0)
    k.barrier()
    k(f"""
    s_mul_i32 s24, {s(sT)}, 114688
    s_mul_i32 s26, {s(sW)}, 7168
    s_add_u32 s24, s24, s26
    s_add_u32 s24, s24, {WS_XS}
    """)
    idx = []
    for m in range(4):
        t = []
        for i in range(7):
            if i % 4 == 0:
                k("s_mov_b32 m0, s26")
            t.append(dma(k, 2, SWS, "s24", None, imm=(i % 4) * 1024))
            if i == 3:
                k("s_add_u32 s24, s24, 4096")
                k("s_add_u32 s26, s26, 4096")
        k(f"s_add_u32 s24, s24, {28672 - 4096}")
        k(f"s_add_u32 s26, s26, {28672 - 4096}")
        idx.append(t)
    ACC = 32
    XF = 96
    k(f"""
    v_and_b32 v8, 1, v1
    v_xor_b32 v8, 1, v8
    v_mul_u32_u24 v8, 896, v8
    v_lshl_add_u32 v8, v4, 4, v8
    v_add_u32 v8, {MB}, v8
    """)
    for i in range(6):
        k(f"ds_read_b128 {v(XF + i * 4, 4)}, v8 offset:{i * 32}")
    for i in range(28):
        for j in range(2):
            k(f"{MF} {v(ACC + 16 * j, 16)}, {v(XF + (i % 8) * 4, 4)}, {a(112 * j + i * 4, 4)}, " + (v(ACC + 16 * j, 16) if i else "0"))
        if i + 6 < 28:
            k(f"ds_read_b128 {v(XF + ((i + 6) % 8) * 4, 4)}, v8 offset:{(i + 6) * 32}")
    EA = 128
    k("v_cmp_gt_u32 vcc, 32, v1")
    k("v_cndmask_b32 v9, 0, -1, vcc")
    for j in range(2):
        c1, c2 = ACC + 16 * j, ACC + 16 * j + 1
        e = EA + 4 * j
        k(f"""
        v_cvt_pk_bf16_f32 {v(e + 1)}, {v(c1)}, {v(c2)}
        v_lshlrev_b32 v10, 16, {v(e + 1)}
        v_and_b32 v11, 0xffff0000, {v(e + 1)}
        v_sub_f32 v12, {v(c1)}, v10
        v_sub_f32 v13, {v(c2)}, v11
        v_cvt_pk_bf16_f32 {v(e)}, v10, v12
        v_cvt_pk_bf16_f32 {v(e + 2)}, v13, v11
        v_and_b32 {v(e)}, v9, {v(e)}
        v_and_b32 {v(e + 1)}, v9, {v(e + 1)}
        v_and_b32 {v(e + 2)}, v9, {v(e + 2)}
        v_mov_b32 {v(e + 3)}, 0
        """)
    EB = 136
    SG = 152
    KX = 156
    k("v_lshlrev_b32 v8, 3, v3")
    k(f"v_add_u32 v8, {SB}, v8")
    for m in range(4):
        k(f"ds_read_b64 {v(16 + 2 * m, 2)}, v8 offset:{256 * m}")
    for m in range(4):
        nm, sg, e = 16 + 2 * m, 17 + 2 * m, EB + 4 * m
        k(f"""
        v_cvt_pk_bf16_f32 v14, {v(nm)}, {v(sg)}
        v_lshlrev_b32 v10, 16, v14
        v_and_b32 v11, 0xffff0000, v14
        v_sub_f32 v12, {v(nm)}, v10
        v_sub_f32 v13, {v(sg)}, v11
        v_cvt_pk_bf16_f32 {v(e)}, v10, v10
        v_cvt_pk_bf16_f32 {v(e + 1)}, v12, v11
        v_cvt_pk_bf16_f32 {v(e + 2)}, v11, v13
        v_mov_b32 {v(e + 3)}, 0
        v_mov_b32 {v(SG + m)}, {v(sg)}
        v_rcp_f32 {v(KX + m)}, {v(sg)}
        v_mul_f32 {v(KX + m)}, {f32(-1.4426950408889634)}, {v(KX + m)}
        """)
    k(f"""
    s_mul_i32 s24, {s(sT)}, {4 * 114688}
    s_lshl_b32 s3, {s(sFS)}, 13
    s_add_u32 s24, s24, s3
    s_lshl_b32 s3, {s(sW)}, 11
    s_add_u32 s24, s24, s3
    s_add_u32 s24, s24, {WS_HM}
    v_add_u32 v15, 57344, v2
    """)
    TMP = 160
    HO = 176

    def epi(m):
        g, u = ACC + 32 * (m & 1), ACC + 32 * (m & 1) + 16
        L = []
        for r0 in range(0, 16, 4):
            rs = range(r0, r0 + 4)
            L += [f"v_mul_f32 {v(TMP + r)}, {v(KX + m)}, {v(g + r)}" for r in rs]
            L += [f"v_exp_f32 {v(TMP + r)}, {v(TMP + r)}" for r in rs]
            L += [f"v_fma_f32 {v(TMP + r)}, {v(TMP + r)}, {v(SG + m)}, {v(SG + m)}" for r in rs]
            L += [f"v_rcp_f32 {v(TMP + r)}, {v(TMP + r)}" for r in rs]
            L += [f"v_mul_f32 {v(TMP + r)}, {v(TMP + r)}, {v(u + r)}" for r in rs]
            L += [f"v_cvt_pk_bf16_f32 {v(HO + r // 2)}, {v(TMP + r)}, {v(TMP + r + 1)}" for r in range(r0, r0 + 4, 2)]
            if r0 == 4:
                L.append(f"buffer_store_dwordx4 {v(HO, 4)}, v2, {s(SWS, 4)}, s24 offen")
            if r0 == 12:
                L.append(f"buffer_store_dwordx4 {v(HO + 4, 4)}, v2, {s(SWS, 4)}, s24 offen offset:1024")
                L.append(f"s_add_u32 s24, s24, 114688")
        return L

    def xrd(n):
        m, ks = divmod(n, 28)
        off = n * 1024
        return f"ds_read_b128 {v(XF + (n % 8) * 4, 4)}, {v(2 if off < 57344 else 15)} offset:{off if off < 57344 else off - 57344}"
    PF = 5
    for m in range(4):
        if m == 0:
            k.wait_ids(idx[0])
            k.barrier()
            for n in range(PF):
                k(xrd(n))
        g, u = ACC + 32 * (m & 1), ACC + 32 * (m & 1) + 16
        main = []
        for ks in range(28):
            n = m * 28 + ks
            main.append(f"{MF} {v(g, 16)}, {a(ks * 4, 4)}, {v(XF + (n % 8) * 4, 4)}, " + (v(g, 16) if ks else "0"))
            nx = n + PF
            t = f"{MF} {v(u, 16)}, {a(112 + ks * 4, 4)}, {v(XF + (n % 8) * 4, 4)}, " + (v(u, 16) if ks else "0")
            if nx < 112:
                if nx % 28 == 0:
                    t += f"\n@W{nx // 28}"
                t += "\n" + xrd(nx)
            main.append(t)
        main.append(f"{MF} {v(g, 16)}, {v(EA, 4)}, {v(EB + 4 * m, 4)}, {v(g, 16)}")
        main.append(f"{MF} {v(u, 16)}, {v(EA + 4, 4)}, {v(EB + 4 * m, 4)}, {v(u, 16)}")
        fill = epi(m - 1) if m else []
        for item in merge(main, fill, start=3, per=3):
            for line in item.split("\n"):
                if line.startswith("@W"):
                    k.wait_ids(idx[int(line[2:])])
                    k.barrier()
                else:
                    k(line)
    for line in epi(3):
        k(line)
    k.label("K3_END")
    k("s_endpgm")
    return k, SB + 1024


def gen_k4():
    k = Kern()
    SWD, SO, SWS = 4, 8, 12
    sG, sJ, sW = 20, 21, 22
    k("s_cmp_ge_u32 s2, 224")
    k("s_cbranch_scc1 K4_END")
    srd_load(k, SWD, "wd")
    srd_load(k, SO, "out")
    srd_load(k, SWS, "ws")
    srd_fin(k, SWD, "wd")
    srd_fin(k, SO, "out")
    srd_fin(k, SWS, "ws")
    wave_id(k, sW, 1)
    k("v_and_b32 v1, 63, v0")
    role(k, sG, sJ)
    k(f"""
    v_lshlrev_b32 v2, 4, v1
    v_and_b32 v3, 31, v1
    v_lshrrev_b32 v4, 5, v1
    v_lshrrev_b32 v5, 2, v1
    v_mul_u32_u24 v5, 896, v5
    v_and_b32 v6, 3, v1
    v_lshl_add_u32 v5, v6, 4, v5
    s_mul_i32 s23, {s(sW)}, {448 * 896}
    s_lshl_b32 s3, {s(sJ)}, 6
    s_add_u32 s23, s23, s3
    s_mul_i32 s25, {s(sW)}, 28672
    """)
    tr_addr(k, 7, 1, 6)
    k("v_add_u32 v7, s25, v7")

    def stage(off):
        k(f"s_add_u32 s24, s23, {off}")
        k("s_mov_b32 s26, s25")
        ids = []
        for i in range(28):
            ids.append(dma(k, 5, SWD, "s24", "s26"))
            k(f"s_add_u32 s24, s24, {16 * 896}")
            k("s_add_u32 s26, s26, 1024")
        return ids
    ids = stage(0)
    k.wait_ids(ids)
    for i in range(28):
        tr_read(k, lambda o: a(i * 4 + o, 2), 7, i * 1024)
    k.waitcnt(lg=0)
    ids = stage(448)
    k(f"""
    s_lshr_b32 s27, {s(sG)}, 1
    s_lshl_b32 s27, s27, 2
    s_and_b32 s3, {s(sG)}, 1
    s_add_u32 s27, s27, s3
    s_mul_i32 s27, s27, 114688
    s_add_u32 s27, s27, s25
    s_add_u32 s27, s27, {WS_HM}
    """)
    HF = 128
    ACC = 16
    X1, GB = 80, 96

    def hload(i):
        k(f"buffer_load_dwordx4 {v(HF + i * 4, 4)}, v2, {s(SWS, 4)}, s27 offen" + (f" offset:{(i % 4) * 1024}" if i % 4 else ""))
        if i % 4 == 3:
            k("s_add_u32 s27, s27, 4096")
    for i in range(28):
        hload(i)
    k(f"s_add_u32 s27, s27, {2 * 114688 - 28672}")
    k.wait_ids(ids)
    for i in range(28):
        tr_read(k, lambda o: a(112 + i * 4 + o, 2), 7, i * 1024)
    sTB, sEB = 28, 29
    k(f"""
    s_sub_u32 s3, 64, {s(sG)}
    s_cmp_eq_u32 {s(sG)}, 0
    s_cselect_b32 s3, 32, s3
    s_cmp_ge_u32 {s(sW)}, 2
    s_cselect_b32 {s(sTB)}, s3, {s(sG)}
    s_and_b32 s3, {s(sW)}, 1
    s_mul_i32 s3, s3, 224
    s_lshl_b32 {s(sEB)}, {s(sJ)}, 5
    s_add_u32 {s(sEB)}, {s(sEB)}, s3
    """)
    for th in range(2):
        for i in range(28):
            for sg in range(2):
                t = ACC + 16 * (th * 2 + sg)
                k(f"{MF} {v(t, 16)}, {a(112 * sg + i * 4, 4)}, {v(HF + i * 4, 4)}, " + (v(t, 16) if i else "0"))
            if th == 0:
                hload(i)
        if th == 0:
            k(f"""
            s_lshl_b32 s24, s2, 14
            s_lshl_b32 s3, {s(sW)}, 12
            s_add_u32 s24, s24, s3
            s_add_u32 s24, s24, {WS_X1}
            v_lshlrev_b32 v8, 4, v4
            s_lshl_b32 s3, {s(sEB)}, 2
            s_add_u32 s3, s3, {WS_MODF + 3 * 1792}
            """)
            for m in range(4):
                k(f"buffer_load_dwordx4 {v(X1 + 4 * m, 4)}, v2, {s(SWS, 4)}, s24 offen" + (f" offset:{1024 * m}" if m else ""))
            for m in range(4):
                k(f"buffer_load_dwordx4 {v(GB + 4 * m, 4)}, v8, {s(SWS, 4)}, s3 offen" + (f" offset:{32 * m}" if m else ""))
    k.waitcnt(lg=0)
    k.barrier()
    k(f"s_lshl_b32 s3, {s(sW)}, 12")
    k("v_add_u32 v9, s3, v2")
    for t in range(4):
        for m in range(4):
            k(f"ds_write_b128 v9, {v(ACC + 16 * t + 4 * m, 4)} offset:{t * 16384 + m * 1024}")
    k(f"s_lshl_b32 s3, {s(sW)}, 14")
    k("v_add_u32 v9, s3, v2")
    k.waitcnt(lg=0)
    k.barrier()
    for w in range(4):
        for m in range(4):
            k(f"ds_read_b128 {v(ACC + 16 * w + 4 * m, 4)}, v9 offset:{w * 4096 + m * 1024}")
    for r in range(16):
        k(f"v_add_f32 {v(ACC + r)}, {v(ACC + r)}, {v(ACC + 16 + r)}")
        k(f"v_add_f32 {v(ACC + 32 + r)}, {v(ACC + 32 + r)}, {v(ACC + 48 + r)}")
    for r in range(16):
        k(f"v_add_f32 {v(ACC + r)}, {v(ACC + r)}, {v(ACC + 32 + r)}")
    for r in range(16):
        k(f"v_fmac_f32 {v(X1 + r)}, {v(GB + r)}, {v(ACC + r)}")
    for m in range(8):
        k(f"v_cvt_pk_bf16_f32 {v(ACC + m)}, {v(X1 + 2 * m)}, {v(X1 + 2 * m + 1)}")
    for q in range(2):
        k(f"v_permlane32_swap_b32 {v(ACC + 4 * q)}, {v(ACC + 4 * q + 2)}")
        k(f"v_permlane32_swap_b32 {v(ACC + 4 * q + 1)}, {v(ACC + 4 * q + 3)}")
    k(f"""
    v_lshl_add_u32 v5, v3, 6, {s(sTB)}
    v_mul_u32_u24 v6, 896, v5
    v_lshl_add_u32 v6, v4, 4, v6
    s_lshl_b32 s3, {s(sEB)}, 1
    buffer_store_dwordx4 {v(ACC, 4)}, v6, {s(SO, 4)}, s3 offen
    buffer_store_dwordx4 {v(ACC + 4, 4)}, v6, {s(SO, 4)}, s3 offen offset:32
    """)
    k.label("K4_END")
    k("s_endpgm")
    return k, 114688


def build(kernels, extra_launch=()):
    ref = open(f"cdna_kernels/{NAME}.s.ref").read().split("\n")
    head = [l for l in ref if l.startswith(";") and "@launch" not in l and "Override launch" not in l and "grid=ceil" not in l]
    out = list(head)
    for name, (k, lds), grid in kernels:
        out.append(f"; @launch kernel={name} grid=({grid},1,1) block=(256,1,1) lds={lds}")
    out.append('.amdgcn_target "amdgcn-amd-amdhsa--gfx950"')
    out.append(".text")
    seen = []
    for name, (k, lds), grid in kernels:
        if name in seen:
            continue
        seen.append(name)
        out += [f".globl {name}", ".p2align 8", f".type {name},@function", f"{name}:", k.text()]
    out.append('.section .rodata,"a"')
    seen = []
    for name, (k, lds), grid in kernels:
        if name in seen:
            continue
        seen.append(name)
        acc = (k.maxv + 4) // 4 * 4
        nfv = acc + k.maxa + 1 if k.maxa >= 0 else k.maxv + 1
        out += [".p2align 6", f".amdhsa_kernel {name}",
                f"  .amdhsa_next_free_vgpr {nfv}", f"  .amdhsa_next_free_sgpr {max(k.maxs + 1, 16)}",
                f"  .amdhsa_accum_offset {acc}", "  .amdhsa_group_segment_fixed_size 0",
                "  .amdhsa_kernarg_size 112", "  .amdhsa_user_sgpr_count 2",
                "  .amdhsa_user_sgpr_kernarg_segment_ptr 1", "  .amdhsa_system_sgpr_workgroup_id_x 1",
                "  .amdhsa_float_denorm_mode_32 3",
                ".end_amdhsa_kernel"]
    return "\n".join(out) + "\n"


if __name__ == "__main__":
    ks = [("p1_kernel", gen_k1(), 252), ("p2_kernel", gen_k2(), 224), ("p3_kernel", gen_k3(), 224), ("p4_kernel", gen_k4(), 224)]
    for n, (k, l), g in ks:
        print(n, "lines", len(k.out), "nops", k.nops, "maxv", k.maxv, "maxa", k.maxa, "maxs", k.maxs, "lds", l, file=sys.stderr)
    open(sys.argv[1] if len(sys.argv) > 1 else "v1.s", "w").write(build(ks))
```

```python
from gen1 import *
def empty():
    k=Kern(); k("v_mov_b32 v1, 0"); k("s_endpgm"); return k,0
def reader(nl, argoff, size):
    k=Kern()
    k("s_cmp_ge_u32 s2, 224"); k("s_cbranch_scc1 RD_END")
    k(f"s_load_dwordx2 s[4:5], s[0:1], {argoff}")
    k(f"s_mov_b32 s6, {size}"); k("s_mov_b32 s7, 0x00020000")
    k("v_lshlrev_b32 v1, 4, v0")
    k(f"s_mul_i32 s3, s2, {nl*4096}")
    for i in range(nl):
        k(f"buffer_load_dwordx4 {v(4+4*i,4)}, v1, s[4:7], s3 offen")
        k("s_add_u32 s3, s3, 4096")
    k.waitcnt(vm=0)
    k.label("RD_END"); k("s_endpgm"); return k,0
ks = [("p1_kernel", gen_k1(), 252), ("p2_kernel", gen_k2(), 224), ("p3_kernel", gen_k3(), 224), ("p4_kernel", gen_k4(), 224)]
e=("e_kernel", empty(), 224)
open("pA.s","w").write(build(ks+[e]))
open("pB.s","w").write(build(ks+[e]*4))
open("pC.s","w").write(build([e]+ks))
open("pD.s","w").write(build([("r_kernel",reader(9,8,8388608),224)]+ks))
open("pE.s","w").write(build(ks+ks))
```

```python
import re

TRANS = ("v_exp_f32", "v_log_f32", "v_rcp_f32", "v_rsq_f32", "v_sqrt_f32", "v_sin_f32", "v_cos_f32")
RMW = ("v_fmac_f32", "v_dot2c_f32_bf16", "v_dot2c_f32_f16", "v_pk_fmac_f16")


def regs_of(tok):
    tok = tok.strip()
    tok = tok.lstrip("-")
    if tok.startswith("abs(") and tok.endswith(")"):
        tok = tok[4:-1]
    if tok.startswith("|") and tok.endswith("|"):
        tok = tok[1:-1]
    m = re.fullmatch(r"([vsa])\[(\d+):(\d+)\]", tok)
    if m:
        return [(m.group(1), i) for i in range(int(m.group(2)), int(m.group(3)) + 1)]
    m = re.fullmatch(r"([vsa])(\d+)", tok)
    if m:
        return [(m.group(1), int(m.group(2)))]
    if tok == "vcc":
        return [("s", "vcc_lo"), ("s", "vcc_hi")]
    if tok in ("vcc_lo", "vcc_hi"):
        return [("s", tok)]
    if tok == "exec":
        return [("s", "exec")]
    if tok == "m0":
        return [("s", "m0")]
    return []


def split_ops(rest):
    out, depth, cur = [], 0, ""
    for ch in rest:
        if ch in "[(":
            depth += 1
        if ch in "])":
            depth -= 1
        if ch == "," and depth == 0:
            out.append(cur.strip())
            cur = ""
        else:
            cur += ch
    if cur.strip():
        out.append(cur.strip())
    return out


class Ins:
    def __init__(self, text):
        self.text = text
        t = text.split(";")[0].strip()
        parts = t.split(None, 1)
        self.op = parts[0]
        rest = parts[1] if len(parts) > 1 else ""
        ops = split_ops(rest)
        mods = ""
        if ops:
            last = ops[-1].split(None, 1)
            ops[-1] = last[0]
            mods = last[1] if len(last) > 1 else ""
        self.ops, self.mods = ops, mods
        op = self.op
        base = re.sub(r"_(e32|e64|dpp|sdwa)$", "", op)
        self.base = base
        self.defs, self.uses = [], []
        self.cls = "other"
        self.passes = 0
        self.mf_a = self.mf_b = self.mf_c = []
        self.store_data = []
        R = regs_of
        if op.startswith("v_mfma"):
            self.cls = "mfma"
            self.defs = R(ops[0])
            self.mf_a, self.mf_b, self.mf_c = R(ops[1]), R(ops[2]), R(ops[3])
            self.uses = self.mf_a + self.mf_b + self.mf_c
            self.passes = 8 if "32x32x16" in op else 4
            assert "32x32x16" in op or "16x16x32" in op
        elif op.startswith("v_"):
            self.cls = "valu"
            if base.startswith("v_permlane") and "swap" in base:
                self.defs = R(ops[0]) + R(ops[1])
                self.uses = R(ops[0]) + R(ops[1])
            elif base in ("v_add_co_u32", "v_sub_co_u32", "v_addc_co_u32"):
                self.defs = R(ops[0]) + R(ops[1])
                self.uses = sum((R(o) for o in ops[2:]), [])
            elif base == "v_nop":
                pass
            else:
                self.defs = R(ops[0])
                self.uses = sum((R(o) for o in ops[1:]), [])
                if base in RMW or op.endswith("_dpp") or "dst_unused:UNUSED_PRESERVE" in mods or base == "v_writelane_b32":
                    self.uses += R(ops[0])
                if base.startswith("v_cmpx"):
                    self.defs += [("s", "exec")]
        elif op.startswith("ds_"):
            self.cls = "ds"
            if op.startswith("ds_read") or op.startswith("ds_bpermute") or op.startswith("ds_swizzle"):
                self.defs = R(ops[0])
                self.uses = sum((R(o) for o in ops[1:]), [])
            else:
                self.uses = sum((R(o) for o in ops), [])
        elif op.startswith("buffer_") or op.startswith("global_"):
            self.cls = "vmem"
            allmods = " " + mods + " "
            if op in ("buffer_inv", "buffer_wbl2"):
                pass
            elif " lds " in allmods or "_lds_" in op:
                self.uses = sum((R(o) for o in ops), []) + [("s", "m0")]
            elif "load" in op:
                self.defs = R(ops[0])
                self.uses = sum((R(o) for o in ops[1:]), [])
                if "d16" in op:
                    self.uses += R(ops[0])
            elif "atomic" in op:
                self.uses = sum((R(o) for o in ops), [])
                if " sc0 " in allmods:
                    self.defs = R(ops[0])
            else:
                self.uses = sum((R(o) for o in ops), [])
                d = R(ops[0]) if op.startswith("buffer_") else R(ops[1])
                if len(d) >= 3:
                    self.store_data = d
        elif op.startswith("s_load") or op in ("s_memtime", "s_memrealtime"):
            self.cls = "smem"
            self.defs = R(ops[0])
            self.uses = sum((R(o) for o in ops[1:]), [])
        elif op.startswith("s_"):
            self.cls = "salu"
            if op.startswith("s_cmp") or op.startswith("s_bitcmp"):
                self.uses = sum((R(o) for o in ops), [])
            elif op in ("s_nop", "s_waitcnt", "s_barrier", "s_endpgm", "s_sleep", "s_setprio", "s_branch") or op.startswith("s_cbranch"):
                pass
            else:
                self.defs = R(ops[0])
                self.uses = sum((R(o) for o in ops[1:]), [])
                if "saveexec" in op:
                    self.defs += [("s", "exec")]
                if op in ("s_addk_i32", "s_mulk_i32"):
                    self.uses += R(ops[0])
        else:
            raise ValueError("unknown instruction " + text)
        self.states = 1
        if op == "s_nop":
            self.states = int(ops[0]) + 1
        self.is_trans = base in TRANS
        self.is_dot = base.startswith("v_dot")
        self.is_dpp = op.endswith("_dpp")
        self.is_perml = base.startswith("v_permlane")
        self.is_rdlane = base in ("v_readfirstlane_b32", "v_readlane_b32")


def need_states(p, c):
    n = 0
    pd, cu, cd = set(p.defs), set(c.uses), set(c.defs)
    vec = lambda s: {r for r in s if r[0] in "va"}
    sca = lambda s: {r for r in s if r[0] == "s"}
    if p.cls == "valu":
        raw = vec(pd) & cu
        if raw:
            if c.cls == "mfma":
                n = max(n, 2)
            if c.is_dpp or c.is_perml:
                n = max(n, 2)
            if c.is_rdlane:
                n = max(n, 1)
            if p.is_trans and c.cls in ("valu",) and not c.is_trans:
                n = max(n, 1)
            if p.is_trans and c.cls != "valu":
                n = max(n, 1)
            if ("op_sel" in p.mods or p.op.endswith("_sdwa")) and c.cls == "valu":
                n = max(n, 1)
        if p.is_dot and (vec(pd) & (cu | cd)):
            if c.base == p.base and not (vec(pd) & set(sum((regs_of(o) for o in c.ops[1:3]), []))):
                pass
            else:
                n = max(n, 3)
        sraw = sca(pd) & cu
        if sraw:
            if c.cls == "vmem":
                n = max(n, 5)
            if c.cls == "valu":
                n = max(n, 4 if c.base in ("v_readlane_b32", "v_writelane_b32") else 2)
            if c.cls in ("salu", "smem"):
                n = max(n, 1)
        if ("s", "exec") in pd:
            if c.is_dpp:
                n = max(n, 5)
            if c.cls == "mfma" or c.is_rdlane or c.is_perml:
                n = max(n, 4)
        if (("s", "vcc_lo") in pd) and c.op in ("s_cbranch_vccz", "s_cbranch_vccnz"):
            n = max(n, 1)
    if p.cls == "mfma":
        big = {8: 12, 4: 8}[p.passes]
        if c.cls == "mfma":
            if pd & (set(c.mf_a) | set(c.mf_b)):
                n = max(n, big)
            if pd & set(c.mf_c):
                if not (c.mf_c == p.defs and c.passes == p.passes):
                    n = max(n, {8: 10, 4: 6}[p.passes])
            elif pd & cd:
                n = max(n, {8: 10, 4: 6}[p.passes])
        else:
            if pd & (cu | cd):
                n = max(n, big)
            if c.cls == "valu" and set(p.mf_c) & cd:
                n = max(n, {8: 7, 4: 3}[p.passes])
    if p.cls == "salu" and ("s", "m0") in pd and ("s", "m0") in cu and c.cls == "vmem":
        n = max(n, 1)
    if p.store_data and set(p.store_data) & cd:
        n = max(n, 2)
    return n


class Kern:
    def __init__(self):
        self.out = []
        self.hist = []
        self.vm = []
        self.lg = []
        self.nid = 0
        self.nops = 0
        self.maxv = -1
        self.maxa = -1
        self.maxs = -1

    def raw(self, text):
        self.out.append(text)

    def comment(self, text):
        self.out.append("    ; " + text)

    def _append(self, ins):
        self.out.append("    " + ins.text)
        self.hist.append(ins)
        if len(self.hist) > 24:
            self.hist.pop(0)
        for r in ins.defs + ins.uses:
            if isinstance(r[1], int):
                if r[0] == "v":
                    self.maxv = max(self.maxv, r[1])
                    assert r[1] < 256, ins.text
                elif r[0] == "a":
                    self.maxa = max(self.maxa, r[1])
                    assert r[1] < 256, ins.text
                else:
                    self.maxs = max(self.maxs, r[1])
                    assert r[1] < 102, ins.text

    def _apply_wait(self, vm=None, lg=None):
        if vm is not None and len(self.vm) > vm:
            self.vm = self.vm[len(self.vm) - vm:] if vm else []
        if lg is not None and len(self.lg) > lg:
            if lg and any(o["smem"] for o in self.lg):
                return
            self.lg = self.lg[len(self.lg) - lg:] if lg else []

    def waitcnt(self, vm=None, lg=None):
        parts = []
        if vm is not None:
            assert vm <= 63
            parts.append(f"vmcnt({vm})")
        if lg is not None:
            assert lg <= 15
            parts.append(f"lgkmcnt({lg})")
        if not parts:
            return
        self._append(Ins("s_waitcnt " + " ".join(parts)))
        self._apply_wait(vm, lg)

    def wait_ids(self, ids):
        if not isinstance(ids, (list, tuple, set)):
            ids = [ids]
        ids = set(ids)
        vm = lg = None
        for i, o in enumerate(self.vm):
            if o["id"] in ids:
                vm = len(self.vm) - 1 - i
        for i, o in enumerate(self.lg):
            if o["id"] in ids:
                lg = len(self.lg) - 1 - i
        if lg is not None and any(o["smem"] for o in self.lg):
            lg = 0
        if vm is not None:
            vm = min(vm, 62)
        if lg is not None:
            lg = min(lg, 14)
        self.waitcnt(vm, lg)

    def I(self, text):
        ins = Ins(text)
        if ins.op == "s_waitcnt":
            m = re.search(r"vmcnt\((\d+)\)", text)
            m2 = re.search(r"lgkmcnt\((\d+)\)", text)
            self.waitcnt(int(m.group(1)) if m else None, int(m2.group(1)) if m2 else None)
            return None
        touched = set(ins.uses) | set(ins.defs)
        ids = [o["id"] for o in self.vm + self.lg if touched & o["defs"]]
        if ids:
            self.wait_ids(ids)
        dist = 0
        need = 0
        for p in reversed(self.hist):
            n = need_states(p, ins)
            if n > dist:
                need = max(need, n - dist)
            dist += p.states
            if dist >= 20:
                break
        while need > 0:
            k = min(need, 16)
            self._append(Ins(f"s_nop {k - 1}"))
            self.nops += 1
            need -= k
        self._append(ins)
        if ins.cls == "vmem":
            self.nid += 1
            self.vm.append(dict(id=self.nid, defs=set(ins.defs)))
            return self.nid
        if ins.cls in ("ds", "smem"):
            self.nid += 1
            self.lg.append(dict(id=self.nid, defs=set(ins.defs), smem=ins.cls == "smem"))
            return self.nid
        return None

    def __call__(self, text):
        last = None
        for line in text.split("\n"):
            line = line.strip()
            if line and not line.startswith(";"):
                last = self.I(line)
        return last

    def label(self, name):
        self.out.append(name + ":")

    def pad(self, n=16):
        self._append(Ins(f"s_nop {n - 1}"))

    def snapshot(self):
        return ([dict(o) for o in self.vm], [dict(o) for o in self.lg], list(self.hist))

    def restore(self, snap):
        self.vm, self.lg, self.hist = [dict(o) for o in snap[0]], [dict(o) for o in snap[1]], list(snap[2])

    STAMPS = False

    def stamp(self, i):
        if self.STAMPS:
            self.I(f"s_memrealtime s[{60 + 2 * i}:{61 + 2 * i}]")
            self.nst = max(getattr(self, "nst", 0), i + 1)

    def stamp_dump(self, srd, off, vt=2):
        if self.STAMPS:
            self.waitcnt(vm=0, lg=0)
            self.I("s_memrealtime s[90:91]")
            self.I(f"v_lshrrev_b32 v{vt}, 6, v0")
            self.I(f"v_lshlrev_b32 v{vt}, 6, v{vt}")
            self.I("s_lshl_b32 s3, s2, 8")
            self.I(f"s_add_u32 s3, s3, {off}")
            for i in list(range(self.nst)) + [15]:
                self.I(f"v_mov_b32 v{vt + 1}, s{60 + 2 * i}")
                self.I(f"buffer_store_dword v{vt + 1}, v{vt}, s[{srd}:{srd + 3}], s3 offen offset:{4 * i}")

    def barrier(self):
        self.I("s_barrier")

    def text(self):
        return "\n".join(self.out)


def v(i, n=1):
    return f"v{i}" if n == 1 else f"v[{i}:{i + n - 1}]"


def a(i, n=1):
    return f"a{i}" if n == 1 else f"a[{i}:{i + n - 1}]"


def s(i, n=1):
    return f"s{i}" if n == 1 else f"s[{i}:{i + n - 1}]"


def f32(x):
    import struct
    return "0x%08x" % struct.unpack("<I", struct.pack("<f", x))[0]
```

```python
import sys
from dsl import *

NAME = "adaLN_cond__spectral_fnet__glu_gated_glu__prompt"
S_, D_, F_ = 2048, 448, 1792
WS_Y = 0x000000
WS_RP = 0x200000
WS_MODF = 0x280000
WS_MODB = 0x282000
WS_SAH = 0x284000
WS_XS = 0x300000
WS_ST = 0x500000
WS_HM = 0x600000
WS_X1 = 0xE00000
WS_SIZE = 0x10000000
WS_DIAG = 0x1300000
KA = dict(x=0, wg=48, wu=56, wd=64, c=72, wm=80, out=88, dbg=96, ws=104)
SZ = dict(x=S_ * D_ * 2, wg=D_ * F_ * 2, wu=D_ * F_ * 2, wd=D_ * F_ * 2, c=D_ * 2, wm=D_ * 6 * D_ * 2,
          out=S_ * D_ * 2, dbg=256, ws=WS_SIZE)
MF = "v_mfma_f32_32x32x16_bf16"
MFH = "v_mfma_f32_32x32x16_f16"


def srd_load(k, base, name):
    k(f"s_load_dwordx2 {s(base, 2)}, s[0:1], {KA[name]}")


def srd_fin(k, base, name):
    k(f"s_mov_b32 {s(base + 2)}, {SZ[name]}")
    k(f"s_mov_b32 {s(base + 3)}, 0x00020000")


def role(k, sq, sr):
    k(f"""
    s_lshr_b32 {s(sr)}, s2, 3
    s_mul_i32 {s(sq)}, {s(sr)}, 37
    s_lshr_b32 {s(sq)}, {s(sq)}, 8
    s_mul_i32 s3, {s(sq)}, 7
    s_sub_u32 {s(sr)}, {s(sr)}, s3
    s_and_b32 s3, s2, 7
    s_lshl_b32 s3, s3, 2
    s_add_u32 {s(sq)}, {s(sq)}, s3
    """)


def wave_id(k, sw, vt):
    k(f"v_lshrrev_b32 {v(vt)}, 6, v0")
    k(f"v_readfirstlane_b32 {s(sw)}, {v(vt)}")


def tr_addr(k, vd, vl, vt):
    k(f"""
    v_lshrrev_b32 {v(vd)}, 5, {v(vl)}
    v_lshlrev_b32 {v(vd)}, 8, {v(vd)}
    v_bfe_u32 {v(vt)}, {v(vl)}, 2, 2
    v_lshl_add_u32 {v(vd)}, {v(vt)}, 6, {v(vd)}
    v_bfe_u32 {v(vt)}, {v(vl)}, 4, 1
    v_lshl_add_u32 {v(vd)}, {v(vt)}, 5, {v(vd)}
    v_and_b32 {v(vt)}, 3, {v(vl)}
    v_lshl_add_u32 {v(vd)}, {v(vt)}, 3, {v(vd)}
    """)


def tr_read(k, dst, vaddr, off):
    k(f"ds_read_b64_tr_b16 {dst(0)}, {v(vaddr)} offset:{off}")
    return k(f"ds_read_b64_tr_b16 {dst(2)}, {v(vaddr)} offset:{off + 512}")


def dma(k, vaddr, srd, soff, lds, imm=0, sc1=False):
    if lds is not None:
        k(f"s_mov_b32 m0, {lds}")
    return k(f"buffer_load_dwordx4 {v(vaddr)}, {s(srd, 4)}, {soff} offen" + (f" offset:{imm}" if imm else "") + (" sc1" if sc1 else "") + " lds")


def round_bf16(k, vd, vs):
    k(f"v_cvt_pk_bf16_f32 {v(vd)}, {v(vs)}, {v(vs)}")
    k(f"v_and_b32 {v(vd)}, 0xffff0000, {v(vd)}")


def gen_k1():
    k = Kern()
    SX, SWS, SWM, SC = 4, 8, 12, 16
    sS1, sC, sW = 20, 21, 22
    k("s_cmp_ge_u32 s2, 252")
    k("s_cbranch_scc1 K1_END")
    k.stamp(0)
    srd_load(k, SX, "x")
    srd_load(k, SWS, "ws")
    srd_load(k, SWM, "wm")
    srd_load(k, SC, "c")
    for b, n in ((SX, "x"), (SWS, "ws"), (SWM, "wm"), (SC, "c")):
        srd_fin(k, b, n)
    wave_id(k, sW, 1)
    k("v_and_b32 v1, 63, v0")
    k("s_cmp_ge_u32 s2, 224")
    k("s_cbranch_scc1 K1_HELP")
    snap = k.snapshot()
    role(k, sS1, sC)
    so = 24
    k(f"s_mul_i32 s3, {s(sS1)}, 896")
    k(f"s_mov_b32 s23, {s(sC)}")
    for i in range(7):
        k(f"s_lshl_b32 {s(so + i)}, s23, 7")
        k(f"s_add_u32 {s(so + i)}, {s(so + i)}, s3")
        if i < 6:
            k("s_add_u32 s23, s23, 1")
            k("s_cmp_eq_u32 s23, 7")
            k("s_cselect_b32 s23, 0, s23")
    k(f"""
    v_lshrrev_b32 v2, 3, v1
    v_lshl_add_u32 v2, {s(sW)}, 4, v2
    v_mul_u32_u24 v3, 28672, v2
    v_and_b32 v4, 7, v1
    v_lshl_add_u32 v3, v4, 4, v3
    v_add_u32 v5, 229376, v3
    """)
    X = 16
    for kk in range(7):
        for i in range(2):
            k(f"buffer_load_dwordx4 {v(X + (i * 7 + kk) * 4, 4)}, {v(3 if i == 0 else 5)}, {s(SX, 4)}, {s(so + kk)} offen")
    FB = 72
    k(f"""
    v_and_b32 v6, 31, v1
    v_cmp_eq_u32 vcc, 0, v6
    s_lshr_b32 s3, {s(sW)}, 1
    s_lshl_b32 s23, s3, 5
    s_lshl_b32 s3, s3, 4
    v_mov_b32 v7, s23
    v_mov_b32 v8, s3
    v_cndmask_b32 v7, v6, v7, vcc
    v_cndmask_b32 v8, v8, 0, vcc
    v_cvt_f32_u32 v7, v7
    v_cvt_f32_u32 v8, v8
    v_mul_f32 v7, {f32(1 / 64)}, v7
    v_mul_f32 v8, {f32(1 / 64)}, v8
    v_lshrrev_b32 v9, 5, v1
    v_lshlrev_b32 v9, 2, v9
    v_cvt_f32_u32 v9, v9
    v_fmac_f32 v8, v9, v7
    """)
    for ks in range(4):
        for pr in range(4):
            for e in range(2):
                n = pr * 2 + e
                s2 = 16 * ks + (n & 3) + 8 * (n >> 2)
                k(f"v_fmamk_f32 {v(10 + e)}, v7, {f32(float(s2))}, v8")
            k("v_cos_f32 v10, v10")
            k("v_cos_f32 v11, v11")
            k(f"v_cvt_pk_f16_f32 {v(FB + ks * 4 + pr)}, v10, v11")
    ZB, OB = 0, 8192
    k(f"""
    v_and_b32 v9, 3, v1
    v_lshlrev_b32 v9, 4, v9
    v_lshl_add_u32 v9, v2, 6, v9
    v_bfe_u32 v10, v1, 2, 1
    v_lshl_add_u32 v9, v10, 12, v9
    """)
    tr_addr(k, 12, 1, 10)
    k(f"s_and_b32 s3, {s(sW)}, 1")
    k("s_lshl_b32 s23, s3, 12")
    k("v_add_u32 v12, s23, v12")
    k(f"""
    s_lshl_b32 s3, s3, 2
    s_lshr_b32 s23, {s(sS1)}, 1
    s_and_b32 s23, s23, 7
    s_xor_b32 s3, s3, s23
    v_lshrrev_b32 v13, 5, v1
    v_xor_b32 v13, s3, v13
    v_and_b32 v10, 7, v1
    v_xor_b32 v13, v13, v10
    v_xor_b32 v14, 2, v13
    s_lshr_b32 s3, {s(sW)}, 1
    s_lshl_b32 s3, s3, 5
    v_add_u32 v10, s3, v6
    v_lshlrev_b32 v10, 7, v10
    v_lshl_add_u32 v13, v13, 4, v10
    v_lshl_add_u32 v14, v14, 4, v10
    """)
    k(f"""
    v_lshrrev_b32 v10, 3, v0
    v_and_b32 v11, 7, v10
    v_xor_b32 v11, v11, v4
    v_lshlrev_b32 v11, 4, v11
    v_lshl_add_u32 v15, v10, 7, v11
    v_mul_u32_u24 v10, 57344, v10
    v_lshl_add_u32 v6, v4, 4, v10
    s_lshl_b32 s3, {s(sC)}, 13
    s_lshl_b32 s23, {s(sS1)}, 7
    s_add_u32 s23, s23, s3
    s_add_u32 s31, s23, 4096
    """)
    k.stamp(1)
    ST = 88
    for i in range(4):
        k(f"v_mov_b32 {v(ST + i)}, 0")
    k("s_mov_b32 s3, 0x3f803f80")
    for kk in range(7):
        for dw in range(4):
            for i in range(2):
                r = X + (i * 7 + kk) * 4 + dw
                k(f"v_dot2c_f32_bf16 {v(ST + 2 * i)}, s3, {v(r)}")
                k(f"v_dot2c_f32_bf16 {v(ST + 2 * i + 1)}, {v(r)}, {v(r)}")
    k.stamp(2)
    for mod in ("quad_perm:[1,0,3,2]", "quad_perm:[2,3,0,1]", "row_half_mirror"):
        for i in range(4):
            k(f"v_add_f32_dpp {v(ST + i)}, {v(ST + i)}, {v(ST + i)} {mod} row_mask:0xf bank_mask:0xf")
    for i in range(2):
        su, sq = ST + 2 * i, ST + 2 * i + 1
        k(f"""
        v_mul_f32 {v(su)}, {f32(1 / 448)}, {v(su)}
        v_mul_f32 {v(sq)}, {f32(1 / 448)}, {v(sq)}
        v_fma_f32 {v(sq)}, -{v(su)}, {v(su)}, {v(sq)}
        v_max_f32 {v(sq)}, 0, {v(sq)}
        v_add_f32 {v(sq)}, {f32(1e-5)}, {v(sq)}
        v_rsq_f32 {v(sq)}, {v(sq)}
        v_mul_f32 {v(su)}, {v(su)}, {v(sq)}
        """)
    for i in range(2):
        su, sq = ST + 2 * i, ST + 2 * i + 1
        for dw in range(4):
            r = X + (i * 7) * 4 + dw
            k(f"""
            v_lshlrev_b32 v10, 16, {v(r)}
            v_and_b32 v11, 0xffff0000, {v(r)}
            v_fma_f32 v10, v10, {v(sq)}, -{v(su)}
            v_fma_f32 v11, v11, {v(sq)}, -{v(su)}
            v_cvt_pk_f16_f32 {v(r)}, v10, v11
            """)
        k(f"ds_write_b128 v9, {v(X + i * 28, 4)} offset:{ZB + i * 512}")
    k.waitcnt(lg=0)
    k.barrier()
    AF = 92
    ACC = 108
    for ks in range(4):
        tr_read(k, lambda o: v(AF + ks * 4 + o, 2), 12, ZB + ks * 1024)
    for ks in range(4):
        k(f"{MFH} {v(ACC, 16)}, {v(AF + ks * 4, 4)}, {v(FB + ks * 4, 4)}, " + (v(ACC, 16) if ks else "0"))
    for p in range(2):
        for m in range(4):
            k(f"v_cvt_pk_bf16_f32 {v(AF + p * 4 + m)}, {v(ACC + 4 * m + p)}, {v(ACC + 4 * m + 2 + p)}")
    k(f"ds_write_b128 v13, {v(AF, 4)} offset:{OB}")
    k(f"ds_write_b128 v14, {v(AF + 4, 4)} offset:{OB}")
    k.waitcnt(lg=0)
    k.barrier()
    k(f"ds_read_b128 {v(AF + 8, 4)}, v15 offset:{OB}")
    k(f"ds_read_b128 {v(AF + 12, 4)}, v15 offset:{OB + 4096}")
    k(f"buffer_store_dwordx4 {v(AF + 8, 4)}, v6, {s(SWS, 4)}, s23 offen")
    k(f"buffer_store_dwordx4 {v(AF + 12, 4)}, v6, {s(SWS, 4)}, s31 offen")
    k.stamp(3)
    k.stamp_dump(SWS, WS_DIAG)
    k("s_endpgm")

    k.label("K1_HELP")
    k.restore(snap)
    sH, sWD, sTB = 20, 21, 23
    PR, SE, SB, RED, BC = 4096, 32768, 0, 1024, 2048
    k(f"""
    s_sub_u32 {s(sH)}, s2, 224
    s_cmp_ge_u32 {s(sH)}, 14
    s_cselect_b32 {s(sTB)}, 1, 0
    s_cselect_b32 s3, 14, 0
    s_sub_u32 {s(sWD)}, {s(sH)}, s3
    v_lshlrev_b32 v2, 2, v0
    """)
    k(f"buffer_load_dword v3, v2, {s(SC, 4)}, 0 offen")
    k(f"""
    v_lshrrev_b32 v4, 2, v1
    s_mul_i32 s3, {s(sW)}, 112
    v_add_u32 v4, s3, v4
    v_mul_u32_u24 v4, 5376, v4
    v_and_b32 v5, 3, v1
    v_lshl_add_u32 v4, v5, 4, v4
    s_lshl_b32 s24, {s(sWD)}, 6
    s_cmp_eq_u32 {s(sTB)}, 0
    s_cselect_b32 s3, 896, 0
    s_add_u32 s24, s24, s3
    s_mul_i32 s25, {s(sW)}, 7168
    """)
    ids_p = []
    for i in range(7):
        k(f"s_add_u32 s26, s25, {PR + i * 1024}")
        ids_p.append(dma(k, 4, SWM, "s24", "s26"))
        k(f"s_add_u32 s24, s24, {16 * 5376}")
    k(f"""
    s_lshl_b32 s24, {s(sH)}, 7
    s_add_u32 s24, s24, 1792
    s_lshl_b32 s27, s25, 1
    """)
    ids_s = []
    for i in range(7):
        for j in range(2):
            k(f"s_add_u32 s26, s27, {SE + (i * 2 + j) * 1024}")
            ids_s.append(dma(k, 4, SWM, "s24", "s26"))
            k(f"s_add_u32 s24, s24, {64 if j == 0 else 16 * 5376 - 64}")
    k(f"""
    v_and_b32 v6, 0xf9, v0
    v_bfe_u32 v7, v0, 1, 1
    v_lshl_add_u32 v6, v7, 2, v6
    v_bfe_u32 v7, v0, 2, 1
    v_lshl_add_u32 v6, v7, 1, v6
    v_lshlrev_b32 v6, 2, v6
    v_lshlrev_b32 v7, 16, v3
    v_and_b32 v8, 0xffff0000, v3
    v_mul_f32 v9, {f32(-1.4426950408889634)}, v7
    v_mul_f32 v10, {f32(-1.4426950408889634)}, v8
    v_exp_f32 v9, v9
    v_exp_f32 v10, v10
    v_add_f32 v9, 1.0, v9
    v_add_f32 v10, 1.0, v10
    v_rcp_f32 v9, v9
    v_rcp_f32 v10, v10
    v_mul_f32 v7, v7, v9
    v_mul_f32 v8, v8, v10
    v_cvt_pk_bf16_f32 v7, v7, v8
    ds_write_b32 v6, v7 offset:{SB}
    """)
    tr_addr(k, 12, 1, 10)
    TG = 64
    k(f"s_cmp_eq_u32 {s(sTB)}, 1")
    k("s_cbranch_scc1 K1_TRB")
    sn2 = k.snapshot()
    k(f"""
    v_lshrrev_b32 v8, 5, v1
    v_lshlrev_b32 v8, 2, v8
    s_lshl_b32 s3, {s(sWD)}, 5
    s_and_b32 s26, {s(sW)}, 1
    s_add_u32 s3, s3, s26
    v_add_u32 v8, s3, v8
    v_cvt_f32_u32 v8, v8
    v_and_b32 v9, 31, v1
    v_cvt_f32_u32 v9, v9
    s_lshr_b32 s26, {s(sW)}, 1
    s_mul_i32 s26, s26, 0x3e800000
    v_mov_b32 v14, s26
    """)
    for n in range(8):
        dn = 2 * (n & 1) + 8 * (n >> 1)
        k(f"""
        v_add_f32 v10, {f32(float(dn))}, v8
        v_mul_f32 v11, v10, v9
        v_fmamk_f32 v11, v11, {f32(1 / 448)}, v14
        v_mul_f32 v10, {f32(1 / 14)}, v10
        v_fract_f32 v10, v10
        """)
        for j in range(7):
            r = TG + j * 8 + n
            if j == 0:
                k(f"v_cos_f32 {v(r)}, v11")
            else:
                k(f"v_fmamk_f32 {v(r)}, v10, {f32(float(j))}, v11")
                k(f"v_cos_f32 {v(r)}, {v(r)}")
    k("s_branch K1_TRD")
    k.label("K1_TRB")
    k.restore(sn2)
    k(f"""
    v_cvt_f32_u32 v8, v0
    v_cvt_f32_u32 v9, {s(sWD)}
    v_mul_f32 v9, v9, v8
    v_mul_f32 v9, {f32(1 / 14)}, v9
    v_fract_f32 v9, v9
    v_mul_f32 v8, {f32(1 / 448)}, v8
    """)
    for i in range(32):
        k(f"v_fmamk_f32 {v(TG + i)}, v8, {f32(float(i))}, v9")
        k(f"v_cos_f32 {v(TG + i)}, {v(TG + i)}")
    k.label("K1_TRD")
    k.stamp(1)
    k.waitcnt(lg=0)
    k.barrier()
    SF = 16
    k(f"""
    v_lshrrev_b32 v8, 5, v1
    v_lshlrev_b32 v8, 4, v8
    s_mul_i32 s3, {s(sW)}, 224
    v_add_u32 v8, s3, v8
    v_add_u32 v13, s25, v12
    """)
    for i in range(7):
        k(f"ds_read_b128 {v(SF + i * 4, 4)}, v8 offset:{SB + i * 32}")
    k.wait_ids(ids_p)
    k.stamp(2)
    WF = 120
    ACC = 176
    for i in range(7):
        tr_read(k, lambda o: v(WF + i * 4 + o, 2), 13, PR + i * 1024)
    for i in range(7):
        k(f"{MF} {v(ACC, 16)}, {v(SF + i * 4, 4)}, {v(WF + i * 4, 4)}, " + (v(ACC, 16) if i else "0"))
    k(f"""
    v_and_b32 v9, 31, v1
    v_lshlrev_b32 v9, 2, v9
    s_lshl_b32 s3, {s(sW)}, 7
    v_add_u32 v10, s3, v9
    ds_write_b32 v10, {v(ACC)} offset:{RED}
    """)
    k.waitcnt(lg=0)
    k.barrier()
    for i in range(4):
        k(f"ds_read_b32 {v(44 + i)}, v9 offset:{RED + i * 128}")
    k("v_add_f32 v44, v44, v45")
    k("v_add_f32 v46, v46, v47")
    k("v_add_f32 v44, v44, v46")
    round_bf16(k, 44, 44)
    k(f"s_cmp_eq_u32 {s(sTB)}, 1")
    k("s_cselect_b32 s3, 0, 1.0")
    k("v_add_f32 v44, s3, v44")
    round_bf16(k, 44, 44)
    k(f"ds_write_b32 v10, v44 offset:{BC}")
    k.waitcnt(lg=0)
    k("s_cbranch_scc1 K1_FB")
    sn3 = k.snapshot()
    k(f"""
    v_lshrrev_b32 v8, 5, v1
    v_lshlrev_b32 v8, 4, v8
    s_and_b32 s26, {s(sW)}, 1
    s_lshl_b32 s26, s26, 2
    s_lshl_b32 s3, {s(sW)}, 7
    s_add_u32 s3, s3, s26
    s_add_u32 s3, s3, {BC}
    v_add_u32 v8, s3, v8
    """)
    for m in range(4):
        k(f"ds_read2_b32 {v(48 + 2 * m, 2)}, v8 offset0:{8 * m} offset1:{8 * m + 2}")
    k(f"""
    v_lshlrev_b32 v9, 4, v1
    s_mul_i32 s3, {s(sW)}, 14
    s_add_u32 s3, s3, {s(sWD)}
    s_lshl_b32 s3, s3, 10
    s_add_u32 s3, s3, {WS_RP}
    """)
    for j in range(7):
        for n in range(8):
            k(f"v_mul_f32 {v(TG + j * 8 + n)}, {v(TG + j * 8 + n)}, {v(48 + n)}")
        for m in range(4):
            k(f"v_cvt_pk_bf16_f32 {v(TG + j * 8 + m)}, {v(TG + j * 8 + 2 * m)}, {v(TG + j * 8 + 2 * m + 1)}")
        k(f"buffer_store_dwordx4 {v(TG + j * 8, 4)}, v9, {s(SWS, 4)}, s3 offen")
        k(f"s_add_u32 s3, s3, {56 * 1024}")
    k.wait_ids(ids_s)
    k("s_branch K1_FD")
    k.label("K1_FB")
    k.restore(sn3)
    k(f"s_lshl_b32 s3, {s(sW)}, 7")
    k(f"v_mov_b32 v8, s3")
    SA = 96
    for m in range(8):
        k(f"ds_read_b128 {v(192 + 4 * m, 4)}, v8 offset:{BC + 16 * m}")
    k(f"v_mul_f32 v10, {v(TG)}, v192")
    k(f"v_mul_f32 v11, {v(TG + 1)}, v193")
    for i in range(2, 32):
        k(f"v_fmac_f32 {v(10 + (i & 1))}, {v(TG + i)}, {v(192 + i)}")
    k(f"""
    v_add_f32 v14, v10, v11
    v_sub_f32 v15, v10, v11
    s_mul_i32 s3, {s(sWD)}, 1792
    s_add_u32 s3, s3, {WS_SAH}
    v_cmp_gt_u32 vcc, 224, v0
    v_cndmask_b32 v9, -1, v2, vcc
    v_and_b32 v9, 0x7ffffffc, v9
    """)
    k(f"buffer_store_dword v14, v9, {s(SWS, 4)}, s3 offen")
    k(f"buffer_store_dword v15, v9, {s(SWS, 4)}, s3 offen offset:896")
    k.wait_ids(ids_s)
    k.label("K1_FD")
    k.vm = []
    k.stamp(3)
    k("v_add_u32 v13, s27, v12")
    for i in range(14):
        tr_read(k, lambda o: v(WF + i * 4 + o, 2), 13, SE + i * 1024)
    for i in range(7):
        for j in range(2):
            k(f"{MF} {v(ACC + 16 * j, 16)}, {v(SF + i * 4, 4)}, {v(WF + (i * 2 + j) * 4, 4)}, " + (v(ACC + 16 * j, 16) if i else "0"))
    k(f"""
    v_cmp_gt_u32 vcc, 32, v1
    v_cndmask_b32 v44, {v(ACC + 16)}, {v(ACC)}, vcc
    ds_write_b32 v2, v44 offset:{SB}
    """)
    k.waitcnt(lg=0)
    k.barrier()
    k(f"s_cmp_lg_u32 {s(sW)}, 0")
    k("s_cbranch_scc1 K1_END")
    for i in range(4):
        k(f"ds_read_b32 {v(44 + i)}, v2 offset:{SB + i * 256}")
    k("v_add_f32 v44, v44, v45")
    k("v_add_f32 v46, v46, v47")
    k("v_add_f32 v44, v44, v46")
    round_bf16(k, 44, 44)
    k(f"""
    s_sub_u32 s3, {s(sH)}, 14
    s_cmp_lt_u32 s3, 7
    s_cselect_b32 s3, 1.0, 0
    v_add_f32 v44, s3, v44
    """)
    round_bf16(k, 44, 44)
    k(f"""
    s_lshl_b32 s3, {s(sH)}, 8
    s_add_u32 s3, s3, {WS_MODF}
    buffer_store_dword v44, v2, {s(SWS, 4)}, s3 offen
    v_and_b32 v6, 0x33, v1
    v_bfe_u32 v7, v1, 2, 1
    v_lshl_add_u32 v6, v7, 3, v6
    v_bfe_u32 v7, v1, 3, 1
    v_lshl_add_u32 v6, v7, 2, v6
    v_lshlrev_b32 v6, 1, v6
    s_lshl_b32 s3, {s(sH)}, 7
    s_add_u32 s3, s3, {WS_MODB}
    buffer_store_short_d16_hi v44, v6, {s(SWS, 4)}, s3 offen
    """)
    k.stamp_dump(SWS, WS_DIAG)
    k.label("K1_END")
    k("s_endpgm")
    return k, 90112


def gen_k2():
    k = Kern()
    SX, SWS = 4, 8
    sG, sJ, sW = 20, 21, 22
    YB, VB, DCB = 0, 57344, 57344 + 16384
    k("s_cmp_ge_u32 s2, 224")
    k("s_cbranch_scc1 K2_END")
    k.stamp(0)
    srd_load(k, SX, "x")
    srd_load(k, SWS, "ws")
    srd_fin(k, SX, "x")
    srd_fin(k, SWS, "ws")
    wave_id(k, sW, 1)
    k("v_and_b32 v1, 63, v0")
    role(k, sG, sJ)
    k("v_lshlrev_b32 v2, 4, v1")
    k(f"""
    s_mul_i32 s24, {s(sG)}, 57344
    s_mul_i32 s25, {s(sW)}, 14336
    s_add_u32 s24, s24, s25
    """)
    idsY = []
    for i in range(14):
        if i % 4 == 0:
            k(f"s_mov_b32 m0, s25")
        idsY.append(dma(k, 2, SWS, "s24", None, imm=(i % 4) * 1024))
        if i % 4 == 3:
            k("s_add_u32 s24, s24, 4096")
            k("s_add_u32 s25, s25, 4096")
    RF = 16
    k(f"""
    s_lshl_b32 s24, {s(sJ)}, 2
    s_add_u32 s24, s24, {s(sW)}
    s_mul_i32 s24, s24, 14336
    s_add_u32 s24, s24, {WS_RP}
    """)
    for i in range(14):
        k(f"buffer_load_dwordx4 {v(RF + i * 4, 4)}, v2, {s(SWS, 4)}, s24 offen" + (f" offset:{(i % 4) * 1024}" if i % 4 else ""))
        if i % 4 == 3:
            k("s_add_u32 s24, s24, 4096")
    sTB, sEB = 26, 27
    k(f"""
    s_sub_u32 s3, 64, {s(sG)}
    s_cmp_eq_u32 {s(sG)}, 0
    s_cselect_b32 s3, 32, s3
    s_cmp_ge_u32 {s(sW)}, 2
    s_cselect_b32 {s(sTB)}, s3, {s(sG)}
    s_and_b32 s3, {s(sW)}, 1
    s_mul_i32 s3, s3, 224
    s_lshl_b32 {s(sEB)}, {s(sJ)}, 5
    s_add_u32 {s(sEB)}, {s(sEB)}, s3
    v_and_b32 v3, 31, v1
    v_lshrrev_b32 v4, 5, v1
    v_lshl_add_u32 v5, v3, 6, {s(sTB)}
    v_mul_u32_u24 v6, 896, v5
    v_lshl_add_u32 v6, v4, 3, v6
    s_lshl_b32 s3, {s(sEB)}, 1
    """)
    XT = 72
    for m in range(4):
        k(f"buffer_load_dwordx2 {v(XT + 2 * m, 2)}, v6, {s(SX, 4)}, s3 offen" + (f" offset:{16 * m}" if m else ""))
    GA, CB = 80, 96
    k(f"""
    v_lshlrev_b32 v7, 4, v4
    s_lshl_b32 s3, {s(sEB)}, 2
    s_add_u32 s3, s3, {WS_MODF}
    """)
    for m in range(4):
        k(f"buffer_load_dwordx4 {v(GA + 4 * m, 4)}, v7, {s(SWS, 4)}, s3 offen" + (f" offset:{32 * m}" if m else ""))
    for m in range(4):
        k(f"buffer_load_dwordx4 {v(CB + 4 * m, 4)}, v7, {s(SWS, 4)}, s3 offen offset:{3584 + 32 * m}")
    TA0, TB0, TA1, TB1 = 112, 120, 128, 136
    k(f"""
    v_cvt_f32_u32 v8, v5
    v_mul_f32 v8, {f32(1 / 2048)}, v8
    v_lshlrev_b32 v9, 2, v4
    v_cvt_f32_u32 v9, v9
    v_mul_f32 v9, v9, v8
    """)
    for q in range(2):
        for pr in range(4):
            for e in range(2):
                n = pr * 2 + e
                s1 = 16 * q + (n & 3) + 8 * (n >> 2)
                k(f"v_fmamk_f32 {v(10 + e)}, v8, {f32(float(s1))}, v9")
            k("v_cos_f32 v12, v10")
            k("v_cos_f32 v13, v11")
            k("v_sin_f32 v10, v10")
            k("v_sin_f32 v11, v11")
            k(f"v_cvt_pk_bf16_f32 {v(TA0 + q * 4 + pr)}, v12, v13")
            k(f"v_cvt_pk_bf16_f32 {v(TB0 + q * 4 + pr)}, v10, v11")
    k(f"s_cmp_eq_u32 {s(sG)}, 0")
    k("s_cbranch_scc1 K2_T0")
    sn = k.snapshot()
    k(f"""
    s_cmp_ge_u32 {s(sW)}, 2
    s_cselect_b32 s3, 0x80008000, 0
    s_cselect_b32 s23, 0, 0x80008000
    """)
    for i in range(8):
        k(f"v_xor_b32 {v(TA1 + i)}, s3, {v(TB0 + i)}")
        k(f"v_xor_b32 {v(TB1 + i)}, s23, {v(TA0 + i)}")
    k("s_branch K2_T1")
    k.label("K2_T0")
    k.restore(sn)
    k(f"""
    s_cmp_ge_u32 {s(sW)}, 2
    s_cselect_b32 s3, -1, 0
    s_cselect_b32 s23, 0, -1
    """)
    for i in range(8):
        k(f"v_and_b32 {v(TA1 + i)}, s3, {v(TA0 + i)}")
        k(f"v_and_b32 {v(TB1 + i)}, s3, {v(TB0 + i)}")
        k(f"v_and_b32 {v(TA0 + i)}, s23, {v(TA0 + i)}")
        k(f"v_and_b32 {v(TB0 + i)}, s23, {v(TB0 + i)}")
    k.label("K2_T1")
    k(f"""
    s_and_b32 s3, {s(sW)}, 1
    s_lshl_b32 s3, s3, 1
    v_bfe_u32 v8, v1, 1, 3
    v_xor_b32 v8, v8, v4
    v_xor_b32 v8, s3, v8
    v_xor_b32 v9, 4, v8
    v_lshlrev_b32 v10, 7, v3
    v_lshl_add_u32 v8, v8, 4, v10
    v_lshl_add_u32 v9, v9, 4, v10
    """)
    k.stamp(1)
    k.wait_ids(idsY)
    k.barrier()
    k.stamp(2)
    YF = 144
    ACC = 176
    seq = [(wd, ri) for wd in range(14) for ri in range(2)]

    def rd(i):
        wd, ri = seq[i]
        k(f"ds_read_b128 {v(YF + (i % 8) * 4, 4)}, {v(8 + (wd & 1))} offset:{YB + ((wd >> 1) * 2 + ri) * 4096}")
    for i in range(6):
        rd(i)
    for i in range(28):
        wd, ri = seq[i]
        k(f"{MF} {v(ACC + 16 * ri, 16)}, {v(YF + (i % 8) * 4, 4)}, {v(RF + wd * 4, 4)}, " + (v(ACC + 16 * ri, 16) if wd else "0"))
        if i + 6 < 28:
            rd(i + 6)
    k(f"s_lshl_b32 s3, {s(sW)}, 12")
    k(f"v_add_u32 v11, {VB}, v2")
    k("v_add_u32 v10, s3, v11")
    for ri in range(2):
        for m in range(8):
            k(f"v_cvt_pk_bf16_f32 {v(RF + ri * 8 + m)}, {v(ACC + 16 * ri + 2 * m)}, {v(ACC + 16 * ri + 2 * m + 1)}")
        for q in range(2):
            k(f"ds_write_b128 v10, {v(RF + ri * 8 + q * 4, 4)} offset:{(ri * 2 + q) * 1024}")
    k.waitcnt(lg=0)
    k.barrier()
    k.stamp(3)
    VF = 208
    order = [(ab, p, ri, q) for ab in range(2) for ri in range(2) for q in range(2) for p in range(2)]
    dst = lambda i: (YF + i * 4) if i < 8 else (VF + (i - 8) * 4)
    for i, (ab, p, ri, q) in enumerate(order):
        k(f"ds_read_b128 {v(dst(i), 4)}, v11 offset:{((ab * 2 + p) * 4 + ri * 2 + q) * 1024}")
    for i, (ab, p, ri, q) in enumerate(order):
        T = {(0, 0): TA0, (1, 0): TB0, (0, 1): TA1, (1, 1): TB1}[(ab, ri)] + q * 4
        k(f"{MF} {v(ACC + 16 * p, 16)}, {v(dst(i), 4)}, {v(T, 4)}, " + (v(ACC + 16 * p, 16) if i >= 2 else "0"))
    k(f"""
    s_and_b32 s3, {s(sW)}, 1
    s_cmp_eq_u32 s3, 0
    s_cselect_b32 s3, 1.0, -1.0
    """)
    for r in range(16):
        k(f"v_fmac_f32 {v(ACC + r)}, s3, {v(ACC + 16 + r)}")
    k.stamp(4)
    k(f"s_cmp_lg_u32 {s(sTB)}, 0")
    k("s_cbranch_scc1 K2_NODC")
    sn = k.snapshot()
    k(f"""
    v_mul_u32_u24 v10, {7 * 1792}, v4
    v_lshl_add_u32 v10, v3, 2, v10
    s_lshl_b32 s3, {s(sEB)}, 2
    s_add_u32 s3, s3, {WS_SAH}
    """)
    for i in range(7):
        k(f"buffer_load_dword {v(RF + i)}, v10, {s(SWS, 4)}, s3 offen")
        k("s_add_u32 s3, s3, 1792")
    for i in range(1, 7):
        k(f"v_add_f32 {v(RF)}, {v(RF)}, {v(RF + i)}")
    k(f"""
    v_mov_b32 {v(RF + 1)}, {v(RF)}
    v_permlane32_swap_b32 {v(RF)}, {v(RF + 1)}
    v_add_f32 {v(RF)}, {v(RF)}, {v(RF + 1)}
    v_mul_f32 {v(RF)}, {f32(2048.0)}, {v(RF)}
    s_lshl_b32 s3, {s(sW)}, 7
    s_add_u32 s3, s3, {DCB}
    v_lshl_add_u32 v10, v3, 2, s3
    ds_write_b32 v10, {v(RF)}
    v_lshl_add_u32 v10, v4, 4, s3
    """)
    k.waitcnt(lg=0)
    for m in range(4):
        k(f"ds_read_b128 {v(RF + 4 * m, 4)}, v10 offset:{32 * m}")
    k("v_cmp_eq_u32 vcc, 0, v3")
    k("v_cndmask_b32 v11, 0, 1.0, vcc")
    for r in range(16):
        k(f"v_fmac_f32 {v(ACC + r)}, v11, {v(RF + r)}")
    k.waitcnt(vm=0, lg=0)
    k.label("K2_NODC")
    k.restore(sn)
    X1 = ACC + 16
    for m in range(4):
        for dw in range(2):
            r = 4 * m + 2 * dw
            k(f"v_lshlrev_b32 {v(X1 + r)}, 16, {v(XT + 2 * m + dw)}")
            k(f"v_and_b32 {v(X1 + r + 1)}, 0xffff0000, {v(XT + 2 * m + dw)}")
    for r in range(16):
        k(f"v_fmac_f32 {v(X1 + r)}, {v(GA + r)}, {v(ACC + r)}")
    for r in range(16):
        k(f"v_mul_f32 {v(ACC + r)}, {v(X1 + r)}, {v(CB + r)}")
    for m in range(8):
        k(f"v_cvt_pk_bf16_f32 {v(RF + m)}, {v(ACC + 2 * m)}, {v(ACC + 2 * m + 1)}")
    k(f"""
    s_lshr_b32 s24, {s(sG)}, 1
    s_lshl_b32 s24, s24, 2
    s_and_b32 s3, {s(sG)}, 1
    s_add_u32 s24, s24, s3
    s_and_b32 s3, {s(sW)}, 2
    s_add_u32 s24, s24, s3
    s_mul_i32 s25, s24, 28672
    s_lshl_b32 s3, {s(sEB)}, 6
    s_add_u32 s25, s25, s3
    s_add_u32 s25, s25, {WS_XS}
    """)
    k(f"buffer_store_dwordx4 {v(RF, 4)}, v2, {s(SWS, 4)}, s25 offen")
    k(f"buffer_store_dwordx4 {v(RF + 4, 4)}, v2, {s(SWS, 4)}, s25 offen offset:1024")
    k(f"v_add_f32 v10, {v(X1)}, {v(X1 + 1)}")
    k(f"v_mul_f32 v11, {v(X1)}, {v(X1)}")
    k(f"v_fmac_f32 v11, {v(X1 + 1)}, {v(X1 + 1)}")
    for r in range(2, 16):
        k(f"v_add_f32 v10, v10, {v(X1 + r)}")
        k(f"v_fmac_f32 v11, {v(X1 + r)}, {v(X1 + r)}")
    k(f"""
    v_permlane32_swap_b32 v10, v11
    v_add_f32 v10, v10, v11
    s_mul_i32 s25, s24, 3584
    s_lshl_b32 s3, {s(sEB)}, 3
    s_add_u32 s25, s25, s3
    s_add_u32 s25, s25, {WS_ST}
    v_lshlrev_b32 v12, 2, v1
    buffer_store_dword v10, v12, {s(SWS, 4)}, s25 offen
    s_lshl_b32 s25, s2, 14
    s_lshl_b32 s3, {s(sW)}, 12
    s_add_u32 s25, s25, s3
    s_add_u32 s25, s25, {WS_X1}
    """)
    for m in range(4):
        k(f"buffer_store_dwordx4 {v(X1 + 4 * m, 4)}, v2, {s(SWS, 4)}, s25 offen" + (f" offset:{1024 * m}" if m else ""))
    k.stamp(5)
    k.stamp_dump(SWS, WS_DIAG + 0x10000)
    k.label("K2_END")
    k("s_endpgm")
    return k, DCB + 512


def merge(main, fill, start=0, per=4):
    out = []
    fi = 0
    for i, m_ in enumerate(main):
        out.append(m_)
        if i >= start:
            cost = 0
            while fi < len(fill) and cost < per:
                c = 2 if any(fill[fi].startswith(t) for t in TRANS) else 1
                out.append(fill[fi])
                fi += 1
                cost += c
    out += fill[fi:]
    return out


def gen_k3():
    k = Kern()
    SWG, SWU, SWS = 4, 8, 12
    sT, sFS, sW = 20, 21, 22
    XB, MB, SB = 0, 114688, 114688 + 2048
    k("s_cmp_ge_u32 s2, 224")
    k("s_cbranch_scc1 K3_END")
    k.stamp(0)
    srd_load(k, SWG, "wg")
    srd_load(k, SWU, "wu")
    srd_load(k, SWS, "ws")
    srd_fin(k, SWG, "wg")
    srd_fin(k, SWU, "wu")
    srd_fin(k, SWS, "ws")
    wave_id(k, sW, 1)
    k("v_and_b32 v1, 63, v0")
    role(k, sT, sFS)
    k(f"""
    s_and_b32 s3, s2, 1
    s_mul_i32 s3, s3, 7
    s_add_u32 {s(sFS)}, {s(sFS)}, s3
    s_and_b32 s3, {s(sT)}, 3
    s_lshr_b32 {s(sT)}, {s(sT)}, 3
    s_lshl_b32 {s(sT)}, {s(sT)}, 2
    s_add_u32 {s(sT)}, {s(sT)}, s3
    v_lshlrev_b32 v2, 4, v1
    v_and_b32 v3, 31, v1
    v_lshrrev_b32 v4, 5, v1
    v_lshrrev_b32 v5, 2, v1
    v_mul_u32_u24 v5, 3584, v5
    v_and_b32 v6, 3, v1
    v_lshl_add_u32 v5, v6, 4, v5
    s_lshl_b32 s23, {s(sFS)}, 8
    s_lshl_b32 s3, {s(sW)}, 6
    s_add_u32 s23, s23, s3
    s_mul_i32 s25, {s(sW)}, 28672
    """)
    tr_addr(k, 7, 1, 6)
    k("v_add_u32 v7, s25, v7")

    def stage(srd):
        k("s_mov_b32 s24, s23")
        k("s_mov_b32 s26, s25")
        ids = []
        for i in range(28):
            ids.append(dma(k, 5, srd, "s24", "s26"))
            k(f"s_add_u32 s24, s24, {16 * 3584}")
            k("s_add_u32 s26, s26, 1024")
        return ids
    ids = stage(SWG)
    k(f"""
    s_mov_b32 s3, {WS_MODB + 896}
    v_lshlrev_b32 v8, 3, v0
    buffer_load_dwordx2 v[10:11], v8, {s(SWS, 4)}, s3 offen
    """)
    k(f"""
    s_lshl_b32 s3, {s(sT)}, 2
    s_add_u32 s3, s3, {s(sW)}
    s_mul_i32 s3, s3, 3584
    s_add_u32 s3, s3, {WS_ST}
    v_lshlrev_b32 v9, 2, v1
    """)
    for i in range(14):
        k(f"buffer_load_dword {v(16 + i)}, v9, {s(SWS, 4)}, s3 offen" + (f" offset:{256 * i}" if i else ""))
    k.stamp(1)
    k.wait_ids(ids)
    k.stamp(2)
    for i in range(28):
        tr_read(k, lambda o: a(i * 4 + o, 2), 7, i * 1024)
    k.waitcnt(lg=0)
    k.stamp(3)
    ids = stage(SWU)
    k(f"v_add_u32 v8, {MB}, v8")
    k(f"ds_write_b64 v8, v[10:11]")
    for i in range(1, 14):
        k(f"v_add_f32 v16, v16, {v(16 + i)}")
    k(f"""
    v_mul_f32 v16, {f32(1 / 448)}, v16
    v_mov_b32 v17, v16
    v_permlane32_swap_b32 v16, v17
    """)
    k(f"""
    v_fma_f32 v17, -v16, v16, v17
    v_max_f32 v17, 0, v17
    v_add_f32 v17, {f32(1e-5)}, v17
    v_sqrt_f32 v17, v17
    v_sub_f32 v16, 0, v16
    s_lshl_b32 s3, {s(sW)}, 8
    s_add_u32 s3, s3, {SB}
    v_lshl_add_u32 v18, v3, 3, s3
    ds_write_b64 v18, v[16:17]
    """)
    k.wait_ids(ids)
    k.stamp(4)
    for i in range(28):
        tr_read(k, lambda o: a(112 + i * 4 + o, 2), 7, i * 1024)
    k.waitcnt(lg=0)
    k.barrier()
    k(f"""
    s_mul_i32 s24, {s(sT)}, 114688
    s_mul_i32 s26, {s(sW)}, 7168
    s_add_u32 s24, s24, s26
    s_add_u32 s24, s24, {WS_XS}
    """)
    idx = []
    for m in range(4):
        t = []
        for i in range(7):
            if i % 4 == 0:
                k("s_mov_b32 m0, s26")
            t.append(dma(k, 2, SWS, "s24", None, imm=(i % 4) * 1024))
            if i == 3:
                k("s_add_u32 s24, s24, 4096")
                k("s_add_u32 s26, s26, 4096")
        k(f"s_add_u32 s24, s24, {28672 - 4096}")
        k(f"s_add_u32 s26, s26, {28672 - 4096}")
        idx.append(t)
    k.stamp(5)
    ACC = 32
    XF = 96
    k(f"""
    v_and_b32 v8, 1, v1
    v_xor_b32 v8, 1, v8
    v_mul_u32_u24 v8, 896, v8
    v_lshl_add_u32 v8, v4, 4, v8
    v_add_u32 v8, {MB}, v8
    """)
    for i in range(6):
        k(f"ds_read_b128 {v(XF + i * 4, 4)}, v8 offset:{i * 32}")
    for i in range(28):
        for j in range(2):
            k(f"{MF} {v(ACC + 16 * j, 16)}, {v(XF + (i % 8) * 4, 4)}, {a(112 * j + i * 4, 4)}, " + (v(ACC + 16 * j, 16) if i else "0"))
        if i + 6 < 28:
            k(f"ds_read_b128 {v(XF + ((i + 6) % 8) * 4, 4)}, v8 offset:{(i + 6) * 32}")
    EA = 128
    k("v_cmp_gt_u32 vcc, 32, v1")
    k("v_cndmask_b32 v9, 0, -1, vcc")
    for j in range(2):
        c1, c2 = ACC + 16 * j, ACC + 16 * j + 1
        e = EA + 4 * j
        k(f"""
        v_cvt_pk_bf16_f32 {v(e + 1)}, {v(c1)}, {v(c2)}
        v_lshlrev_b32 v10, 16, {v(e + 1)}
        v_and_b32 v11, 0xffff0000, {v(e + 1)}
        v_sub_f32 v12, {v(c1)}, v10
        v_sub_f32 v13, {v(c2)}, v11
        v_cvt_pk_bf16_f32 {v(e)}, v10, v12
        v_cvt_pk_bf16_f32 {v(e + 2)}, v13, v11
        v_and_b32 {v(e)}, v9, {v(e)}
        v_and_b32 {v(e + 1)}, v9, {v(e + 1)}
        v_and_b32 {v(e + 2)}, v9, {v(e + 2)}
        v_mov_b32 {v(e + 3)}, 0
        """)
    EB = 136
    SG = 152
    KX = 156
    k("v_lshlrev_b32 v8, 3, v3")
    k(f"v_add_u32 v8, {SB}, v8")
    for m in range(4):
        k(f"ds_read_b64 {v(16 + 2 * m, 2)}, v8 offset:{256 * m}")
    for m in range(4):
        nm, sg, e = 16 + 2 * m, 17 + 2 * m, EB + 4 * m
        k(f"""
        v_cvt_pk_bf16_f32 v14, {v(nm)}, {v(sg)}
        v_lshlrev_b32 v10, 16, v14
        v_and_b32 v11, 0xffff0000, v14
        v_sub_f32 v12, {v(nm)}, v10
        v_sub_f32 v13, {v(sg)}, v11
        v_cvt_pk_bf16_f32 {v(e)}, v10, v10
        v_cvt_pk_bf16_f32 {v(e + 1)}, v12, v11
        v_cvt_pk_bf16_f32 {v(e + 2)}, v11, v13
        v_mov_b32 {v(e + 3)}, 0
        v_mov_b32 {v(SG + m)}, {v(sg)}
        v_rcp_f32 {v(KX + m)}, {v(sg)}
        v_mul_f32 {v(KX + m)}, {f32(-1.4426950408889634)}, {v(KX + m)}
        """)
    k(f"""
    s_mul_i32 s24, {s(sT)}, {4 * 114688}
    s_lshl_b32 s3, {s(sFS)}, 13
    s_add_u32 s24, s24, s3
    s_lshl_b32 s3, {s(sW)}, 11
    s_add_u32 s24, s24, s3
    s_add_u32 s24, s24, {WS_HM}
    v_add_u32 v15, 57344, v2
    """)
    TMP = 160
    HO = 176

    def epi(m):
        g, u = ACC + 32 * (m & 1), ACC + 32 * (m & 1) + 16
        L = []
        for r0 in range(0, 16, 4):
            rs = range(r0, r0 + 4)
            L += [f"v_mul_f32 {v(TMP + r)}, {v(KX + m)}, {v(g + r)}" for r in rs]
            L += [f"v_exp_f32 {v(TMP + r)}, {v(TMP + r)}" for r in rs]
            L += [f"v_fma_f32 {v(TMP + r)}, {v(TMP + r)}, {v(SG + m)}, {v(SG + m)}" for r in rs]
            L += [f"v_rcp_f32 {v(TMP + r)}, {v(TMP + r)}" for r in rs]
            L += [f"v_mul_f32 {v(TMP + r)}, {v(TMP + r)}, {v(u + r)}" for r in rs]
            L += [f"v_cvt_pk_bf16_f32 {v(HO + r // 2)}, {v(TMP + r)}, {v(TMP + r + 1)}" for r in range(r0, r0 + 4, 2)]
            if r0 == 4:
                L.append(f"buffer_store_dwordx4 {v(HO, 4)}, v2, {s(SWS, 4)}, s24 offen")
            if r0 == 12:
                L.append(f"buffer_store_dwordx4 {v(HO + 4, 4)}, v2, {s(SWS, 4)}, s24 offen offset:1024")
                L.append(f"s_add_u32 s24, s24, 114688")
        return L

    def xrd(n):
        m, ks = divmod(n, 28)
        off = n * 1024
        return f"ds_read_b128 {v(XF + (n % 8) * 4, 4)}, {v(2 if off < 57344 else 15)} offset:{off if off < 57344 else off - 57344}"
    PF = 5
    for m in range(4):
        k.stamp(6 + m)
        if m == 0:
            k.wait_ids(idx[0])
            k.barrier()
            for n in range(PF):
                k(xrd(n))
        g, u = ACC + 32 * (m & 1), ACC + 32 * (m & 1) + 16
        main = []
        for ks in range(28):
            n = m * 28 + ks
            main.append(f"{MF} {v(g, 16)}, {a(ks * 4, 4)}, {v(XF + (n % 8) * 4, 4)}, " + (v(g, 16) if ks else "0"))
            nx = n + PF
            t = f"{MF} {v(u, 16)}, {a(112 + ks * 4, 4)}, {v(XF + (n % 8) * 4, 4)}, " + (v(u, 16) if ks else "0")
            if nx < 112:
                if nx % 28 == 0:
                    t += f"\n@W{nx // 28}"
                t += "\n" + xrd(nx)
            main.append(t)
        main.append(f"{MF} {v(g, 16)}, {v(EA, 4)}, {v(EB + 4 * m, 4)}, {v(g, 16)}")
        main.append(f"{MF} {v(u, 16)}, {v(EA + 4, 4)}, {v(EB + 4 * m, 4)}, {v(u, 16)}")
        fill = epi(m - 1) if m else []
        for item in merge(main, fill, start=3, per=3):
            for line in item.split("\n"):
                if line.startswith("@W"):
                    k.wait_ids(idx[int(line[2:])])
                    k.barrier()
                else:
                    k(line)
    k.stamp(10)
    for line in epi(3):
        k(line)
    k.stamp(11)
    k.stamp_dump(SWS, WS_DIAG + 0x20000)
    k.label("K3_END")
    k("s_endpgm")
    return k, SB + 1024


def gen_k4():
    k = Kern()
    SWD, SO, SWS = 4, 8, 12
    sG, sJ, sW = 20, 21, 22
    k("s_cmp_ge_u32 s2, 224")
    k("s_cbranch_scc1 K4_END")
    k.stamp(0)
    srd_load(k, SWD, "wd")
    srd_load(k, SO, "out")
    srd_load(k, SWS, "ws")
    srd_fin(k, SWD, "wd")
    srd_fin(k, SO, "out")
    srd_fin(k, SWS, "ws")
    wave_id(k, sW, 1)
    k("v_and_b32 v1, 63, v0")
    role(k, sG, sJ)
    k(f"""
    v_lshlrev_b32 v2, 4, v1
    v_and_b32 v3, 31, v1
    v_lshrrev_b32 v4, 5, v1
    v_lshrrev_b32 v5, 2, v1
    v_mul_u32_u24 v5, 896, v5
    v_and_b32 v6, 3, v1
    v_lshl_add_u32 v5, v6, 4, v5
    s_mul_i32 s23, {s(sW)}, {448 * 896}
    s_lshl_b32 s3, {s(sJ)}, 6
    s_add_u32 s23, s23, s3
    s_mul_i32 s25, {s(sW)}, 28672
    """)
    tr_addr(k, 7, 1, 6)
    k("v_add_u32 v7, s25, v7")

    def stage(off):
        k(f"s_add_u32 s24, s23, {off}")
        k("s_mov_b32 s26, s25")
        ids = []
        for i in range(28):
            ids.append(dma(k, 5, SWD, "s24", "s26"))
            k(f"s_add_u32 s24, s24, {16 * 896}")
            k("s_add_u32 s26, s26, 1024")
        return ids
    ids = stage(0)
    k.stamp(1)
    k.wait_ids(ids)
    k.stamp(2)
    for i in range(28):
        tr_read(k, lambda o: a(i * 4 + o, 2), 7, i * 1024)
    k.waitcnt(lg=0)
    k.stamp(3)
    ids = stage(448)
    k(f"""
    s_lshr_b32 s27, {s(sG)}, 1
    s_lshl_b32 s27, s27, 2
    s_and_b32 s3, {s(sG)}, 1
    s_add_u32 s27, s27, s3
    s_mul_i32 s27, s27, 114688
    s_add_u32 s27, s27, s25
    s_add_u32 s27, s27, {WS_HM}
    """)
    HF = 128
    ACC = 16
    X1, GB = 80, 96

    def hload(i):
        k(f"buffer_load_dwordx4 {v(HF + i * 4, 4)}, v2, {s(SWS, 4)}, s27 offen" + (f" offset:{(i % 4) * 1024}" if i % 4 else ""))
        if i % 4 == 3:
            k("s_add_u32 s27, s27, 4096")
    for i in range(28):
        hload(i)
    k(f"s_add_u32 s27, s27, {2 * 114688 - 28672}")
    k.wait_ids(ids)
    k.stamp(4)
    for i in range(28):
        tr_read(k, lambda o: a(112 + i * 4 + o, 2), 7, i * 1024)
    sTB, sEB = 28, 29
    k(f"""
    s_sub_u32 s3, 64, {s(sG)}
    s_cmp_eq_u32 {s(sG)}, 0
    s_cselect_b32 s3, 32, s3
    s_cmp_ge_u32 {s(sW)}, 2
    s_cselect_b32 {s(sTB)}, s3, {s(sG)}
    s_and_b32 s3, {s(sW)}, 1
    s_mul_i32 s3, s3, 224
    s_lshl_b32 {s(sEB)}, {s(sJ)}, 5
    s_add_u32 {s(sEB)}, {s(sEB)}, s3
    """)
    for th in range(2):
        k.stamp(5 + th)
        for i in range(28):
            for sg in range(2):
                t = ACC + 16 * (th * 2 + sg)
                k(f"{MF} {v(t, 16)}, {a(112 * sg + i * 4, 4)}, {v(HF + i * 4, 4)}, " + (v(t, 16) if i else "0"))
            if th == 0:
                hload(i)
        if th == 0:
            k(f"""
            s_lshl_b32 s24, s2, 14
            s_lshl_b32 s3, {s(sW)}, 12
            s_add_u32 s24, s24, s3
            s_add_u32 s24, s24, {WS_X1}
            v_lshlrev_b32 v8, 4, v4
            s_lshl_b32 s3, {s(sEB)}, 2
            s_add_u32 s3, s3, {WS_MODF + 3 * 1792}
            """)
            for m in range(4):
                k(f"buffer_load_dwordx4 {v(X1 + 4 * m, 4)}, v2, {s(SWS, 4)}, s24 offen" + (f" offset:{1024 * m}" if m else ""))
            for m in range(4):
                k(f"buffer_load_dwordx4 {v(GB + 4 * m, 4)}, v8, {s(SWS, 4)}, s3 offen" + (f" offset:{32 * m}" if m else ""))
    k.stamp(7)
    k.waitcnt(lg=0)
    k.barrier()
    k(f"s_lshl_b32 s3, {s(sW)}, 12")
    k("v_add_u32 v9, s3, v2")
    for t in range(4):
        for m in range(4):
            k(f"ds_write_b128 v9, {v(ACC + 16 * t + 4 * m, 4)} offset:{t * 16384 + m * 1024}")
    k(f"s_lshl_b32 s3, {s(sW)}, 14")
    k("v_add_u32 v9, s3, v2")
    k.waitcnt(lg=0)
    k.barrier()
    for w in range(4):
        for m in range(4):
            k(f"ds_read_b128 {v(ACC + 16 * w + 4 * m, 4)}, v9 offset:{w * 4096 + m * 1024}")
    for r in range(16):
        k(f"v_add_f32 {v(ACC + r)}, {v(ACC + r)}, {v(ACC + 16 + r)}")
        k(f"v_add_f32 {v(ACC + 32 + r)}, {v(ACC + 32 + r)}, {v(ACC + 48 + r)}")
    for r in range(16):
        k(f"v_add_f32 {v(ACC + r)}, {v(ACC + r)}, {v(ACC + 32 + r)}")
    for r in range(16):
        k(f"v_fmac_f32 {v(X1 + r)}, {v(GB + r)}, {v(ACC + r)}")
    for m in range(8):
        k(f"v_cvt_pk_bf16_f32 {v(ACC + m)}, {v(X1 + 2 * m)}, {v(X1 + 2 * m + 1)}")
    for q in range(2):
        k(f"v_permlane32_swap_b32 {v(ACC + 4 * q)}, {v(ACC + 4 * q + 2)}")
        k(f"v_permlane32_swap_b32 {v(ACC + 4 * q + 1)}, {v(ACC + 4 * q + 3)}")
    k(f"""
    v_lshl_add_u32 v5, v3, 6, {s(sTB)}
    v_mul_u32_u24 v6, 896, v5
    v_lshl_add_u32 v6, v4, 4, v6
    s_lshl_b32 s3, {s(sEB)}, 1
    buffer_store_dwordx4 {v(ACC, 4)}, v6, {s(SO, 4)}, s3 offen
    buffer_store_dwordx4 {v(ACC + 4, 4)}, v6, {s(SO, 4)}, s3 offen offset:32
    """)
    k.stamp(8)
    k.stamp_dump(SWS, WS_DIAG + 0x30000)
    k.label("K4_END")
    k("s_endpgm")
    return k, 114688


def build(kernels, extra_launch=()):
    ref = open(f"cdna_kernels/{NAME}.s.ref").read().split("\n")
    head = [l for l in ref if l.startswith(";") and "@launch" not in l and "Override launch" not in l and "grid=ceil" not in l]
    out = list(head)
    for name, (k, lds), grid in kernels:
        out.append(f"; @launch kernel={name} grid=({grid},1,1) block=(256,1,1) lds={lds}")
    out.append('.amdgcn_target "amdgcn-amd-amdhsa--gfx950"')
    out.append(".text")
    seen = []
    for name, (k, lds), grid in kernels:
        if name in seen:
            continue
        seen.append(name)
        out += [f".globl {name}", ".p2align 8", f".type {name},@function", f"{name}:", k.text()]
    out.append('.section .rodata,"a"')
    seen = []
    for name, (k, lds), grid in kernels:
        if name in seen:
            continue
        seen.append(name)
        acc = (k.maxv + 4) // 4 * 4
        nfv = acc + k.maxa + 1 if k.maxa >= 0 else k.maxv + 1
        out += [".p2align 6", f".amdhsa_kernel {name}",
                f"  .amdhsa_next_free_vgpr {nfv}", f"  .amdhsa_next_free_sgpr {max(k.maxs + 1, 16)}",
                f"  .amdhsa_accum_offset {acc}", "  .amdhsa_group_segment_fixed_size 0",
                "  .amdhsa_kernarg_size 112", "  .amdhsa_user_sgpr_count 2",
                "  .amdhsa_user_sgpr_kernarg_segment_ptr 1", "  .amdhsa_system_sgpr_workgroup_id_x 1",
                "  .amdhsa_float_denorm_mode_32 3",
                ".end_amdhsa_kernel"]
    return "\n".join(out) + "\n"


if __name__ == "__main__":
    if len(sys.argv) > 2 and sys.argv[2] == "stamps":
        Kern.STAMPS = True
    ks = [("p1_kernel", gen_k1(), 252), ("p2_kernel", gen_k2(), 224), ("p3_kernel", gen_k3(), 224), ("p4_kernel", gen_k4(), 224)]
    for n, (k, l), g in ks:
        print(n, "lines", len(k.out), "nops", k.nops, "maxv", k.maxv, "maxa", k.maxa, "maxs", k.maxs, "lds", l, file=sys.stderr)
    open(sys.argv[1] if len(sys.argv) > 1 else "v1.s", "w").write(build(ks))
```

```python
from dsl import *
def leak(ws_size, offA, modeA, offB, modeB, mult, nwg=224, first=0):
    k=Kern()
    k("s_cmp_ge_u32 s2, 1"); k("s_cbranch_scc1 LK_END")
    k("s_load_dwordx2 s[8:9], s[0:1], 104"); k(f"s_mov_b32 s10, {ws_size}"); k("s_mov_b32 s11, 0x00020000")
    k(f"v_min_u32 v1, {nwg-1}, v0"); k(f"v_add_u32 v1, {first}, v1"); k("v_lshlrev_b32 v1, 8, v1")
    k(f"s_mov_b32 s4, {offA}"); k(f"s_mov_b32 s5, {offB}")
    k("buffer_load_dword v2, v1, s[8:11], s4 offen"); k("buffer_load_dword v3, v1, s[8:11], s5 offen")
    k("v_mov_b32 v4, 0")
    k("ds_write_b32 v4, v2"); k("ds_write_b32 v4, v3 offset:4")
    k.waitcnt(lg=0); k.barrier()
    k(f"ds_{modeA}_u32 v4, v2"); k(f"ds_{modeB}_u32 v4, v3 offset:4")
    k.waitcnt(lg=0); k.barrier()
    k("ds_read_b64 v[6:7], v4")
    k("v_sub_u32 v6, v7, v6"); k("v_min_u32 v6, 10000, v6")
    k("v_readfirstlane_b32 s6, v6")
    k(f"s_mul_i32 s6, s6, {mult}")
    k("s_memrealtime s[12:13]"); k.waitcnt(lg=0)
    k.label("LK_SPIN")
    k("s_memrealtime s[14:15]"); k.waitcnt(lg=0)
    k("s_sub_u32 s7, s14, s12"); k("s_cmp_lt_u32 s7, s6"); k("s_cbranch_scc1 LK_SPIN")
    k.label("LK_END"); k("s_endpgm")
    return k,64
```

```python
from gen1 import *
from leak import leak
Kern.STAMPS=True
ks = [("p1_kernel", gen_k1(), 252), ("p2_kernel", gen_k2(), 224), ("p3_kernel", gen_k3(), 224), ("p4_kernel", gen_k4(), 224)]
D=WS_DIAG
def mk(fn,ka,ia,ma,kb,ib,mb,mult=4,**kw):
    open(fn,"w").write(build(ks+[("lk_kernel",leak(WS_SIZE,D+ka*0x10000+ia*4,ma,D+kb*0x10000+ib*4,mb,mult,**kw),1)]))
mk("q0.s",0,0,"min",3,15,"max",0)
mk("q1.s",0,0,"min",3,15,"max")
mk("q2.s",0,0,"min",1,0,"min")
mk("q3.s",1,0,"min",2,0,"min")
mk("q4.s",2,0,"min",3,0,"min")
mk("q5.s",0,0,"min",0,2,"max")
```

```python
import sys
from dsl import *

NAME = "adaLN_cond__spectral_fnet__glu_gated_glu__prompt"
S_, D_, F_ = 2048, 448, 1792
WS_Y = 0x000000
WS_RP = 0x1C0000
WS_MODF = 0x222000
WS_MODB = 0x224000
WS_SAH = 0x225000
WS_ST = 0x230000
WS_FL = 0x270000
WS_XS = 0x2C0000
WS_WDT = 0x480000
WS_HM = 0x610000
WS_DIAG = 0x1300000
WS_SIZE = 0x10000000
FS = 128
FL1 = WS_FL
FH2 = WS_FL + 256 * FS
FH3 = WS_FL + 288 * FS
FL2 = WS_FL + 320 * FS
FL3 = FL2 + 1024 * FS
KA = dict(x=0, wg=48, wu=56, wd=64, c=72, wm=80, out=88, dbg=96, ws=104)
SZ = dict(x=S_ * D_ * 2, wg=D_ * F_ * 2, wu=D_ * F_ * 2, wd=D_ * F_ * 2, c=D_ * 2, wm=D_ * 6 * D_ * 2,
          out=S_ * D_ * 2, dbg=256, ws=WS_SIZE)
MF = "v_mfma_f32_32x32x16_bf16"
MFH = "v_mfma_f32_32x32x16_f16"
SPIN_MAX = 20000
HM_LAYOUT = 2

OPT = dict(nA=14, nA2=21, codepf=1)


def srd_load(k, base, name):
    k(f"s_load_dwordx2 {s(base, 2)}, s[0:1], {KA[name]}")


def srd_fin(k, base, name):
    k(f"s_mov_b32 {s(base + 2)}, {SZ[name]}")
    k(f"s_mov_b32 {s(base + 3)}, 0x00020000")


def round_bf16(k, vd, vs):
    k(f"v_cvt_pk_bf16_f32 {v(vd)}, {v(vs)}, {v(vs)}")
    k(f"v_and_b32 {v(vd)}, 0xffff0000, {v(vd)}")


def off(n):
    return f" offset:{n}" if n else ""


def lines(txt):
    return [l.strip() for l in txt.split("\n") if l.strip()]


def cost(l):
    return 2 if any(l.startswith(t) for t in TRANS) else 1


def merge(main, fill, start=0, per=4):
    out = []
    fi = 0
    for i, m_ in enumerate(main):
        out.append(m_)
        if i >= start:
            c = 0
            while fi < len(fill) and c < per:
                out.append(fill[fi])
                c += sum(cost(l) for l in fill[fi].split("\n"))
                fi += 1
    out += fill[fi:]
    return out


def sprinkle(main, items, every, start=0):
    out = []
    it = list(items)
    for i, m_ in enumerate(main):
        out.append(m_)
        if i >= start and (i - start) % every == every - 1 and it:
            out.append(it.pop(0))
    return out + it


class Gen:
    def __init__(self):
        self.k = Kern()
        self.tags = {}
        self.nlab = 0

    def emit(self, items):
        k = self.k
        for item in items:
            for l in item.split("\n"):
                l = l.strip()
                if not l:
                    continue
                if l.startswith("@wait "):
                    k.wait_ids(self.tags.get(l[6:], []))
                elif l == "@bar":
                    k.barrier()
                elif l == "@lg0":
                    k.waitcnt(lg=0)
                elif l.startswith("@stamp "):
                    k.stamp(int(l[7:]))
                elif l.startswith("@call "):
                    getattr(self, l[6:].split()[0])(*l[6:].split()[1:])
                elif "#" in l:
                    t, tag = l.split("#")
                    self.tags.setdefault(tag.strip(), []).append(k(t))
                else:
                    k(l)

    def poll(self, loads, val, scnt, vtmp):
        k = self.k
        self.nlab += 1
        L = f"POLL{self.nlab}"
        k(f"s_mov_b32 {s(scnt)}, 0")
        k.label(L)
        for i, (va, srd, so) in enumerate(loads):
            k(f"buffer_load_dword {v(vtmp + i)}, {v(va)}, {s(srd, 4)}, {so} offen sc1")
        k.waitcnt(vm=0)
        for i in range(1, len(loads)):
            k(f"v_min_u32 {v(vtmp)}, {v(vtmp)}, {v(vtmp + i)}")
        k(f"v_cmp_gt_u32 vcc, {val}, {v(vtmp)}")
        k(f"s_add_u32 {s(scnt)}, {s(scnt)}, 1")
        k(f"s_cbranch_vccz {L}D")
        k(f"s_cmp_lt_u32 {s(scnt)}, {SPIN_MAX}")
        k(f"s_cbranch_scc1 {L}")
        k.label(L + "D")


def gen():
    G = Gen()
    k = G.k
    SX, SWS, SA, SB_, SC, SD = 4, 8, 12, 16, 20, 24
    sQ, sR, sW, sT, sFS, sTB, sEB = 28, 29, 30, 31, 32, 33, 34
    k("s_cmp_ge_u32 s2, 256")
    k("s_cbranch_scc1 K_END")
    k.stamp(0)
    srd_load(k, SX, "x")
    srd_load(k, SWS, "ws")
    srd_load(k, SD, "dbg")
    k("s_cmp_lt_u32 s2, 32")
    k("s_cbranch_scc1 K_HELP")
    snap0 = k.snapshot()
    srd_load(k, SA, "wg")
    srd_load(k, SB_, "wu")
    srd_load(k, SC, "out")
    srd_fin(k, SX, "x")
    k(f"""
    v_lshrrev_b32 v5, 6, v0
    v_and_b32 v1, 63, v0
    v_readfirstlane_b32 {s(sW)}, v5
    s_lshr_b32 {s(sR)}, s2, 3
    s_sub_u32 {s(sR)}, {s(sR)}, 4
    s_mul_i32 {s(sQ)}, {s(sR)}, 37
    s_lshr_b32 {s(sQ)}, {s(sQ)}, 8
    s_mul_i32 s3, {s(sQ)}, 7
    s_sub_u32 {s(sR)}, {s(sR)}, s3
    s_and_b32 s3, s2, 7
    s_lshl_b32 s3, s3, 2
    s_add_u32 {s(sQ)}, {s(sQ)}, s3
    v_lshrrev_b32 v6, 3, v1
    v_lshl_add_u32 v6, v5, 4, v6
    v_mul_u32_u24 v7, 28672, v6
    v_and_b32 v8, 7, v1
    v_lshl_add_u32 v7, v8, 4, v7
    v_add_u32 v9, 229376, v7
    s_mul_i32 s36, {s(sQ)}, 896
    s_lshl_b32 s35, {s(sR)}, 7
    s_add_u32 s35, s35, s36
    s_add_u32 s37, s36, 896
    """)
    X = 16
    for kk in range(7):
        for i in range(2):
            k(f"buffer_load_dwordx4 {v(X + (i * 7 + kk) * 4, 4)}, {v(7 if i == 0 else 9)}, {s(SX, 4)}, s35 offen")
        if kk < 6:
            k("s_add_u32 s35, s35, 128")
            k("s_cmp_eq_u32 s35, s37")
            k("s_cselect_b32 s35, s36, s35")
    for b, n in ((SWS, "ws"), (SD, "dbg"), (SA, "wg"), (SB_, "wu"), (SC, "out")):
        srd_fin(k, b, n)
    k(f"""
    s_and_b32 s3, s2, 1
    s_mul_i32 s3, s3, 7
    s_add_u32 {s(sFS)}, {s(sR)}, s3
    s_and_b32 s3, {s(sQ)}, 3
    s_lshr_b32 {s(sT)}, {s(sQ)}, 3
    s_lshl_b32 {s(sT)}, {s(sT)}, 2
    s_add_u32 {s(sT)}, {s(sT)}, s3
    s_sub_u32 s3, 64, {s(sQ)}
    s_cmp_eq_u32 {s(sQ)}, 0
    s_cselect_b32 s3, 32, s3
    s_cmp_ge_u32 {s(sW)}, 2
    s_cselect_b32 {s(sTB)}, s3, {s(sQ)}
    s_and_b32 s3, {s(sW)}, 1
    s_mul_i32 s3, s3, 224
    s_lshl_b32 {s(sEB)}, {s(sR)}, 5
    s_add_u32 {s(sEB)}, {s(sEB)}, s3
    v_lshlrev_b32 v2, 4, v1
    v_and_b32 v3, 31, v1
    v_lshrrev_b32 v4, 5, v1
    """)
    vTOK, vWD, vTR, vFLG = 10, 11, 12, 13
    XT = 240
    TA0, TB0, TA1, TB1 = 208, 216, 224, 232
    k(f"""
    v_lshl_add_u32 v5, v3, 6, {s(sTB)}
    v_mul_u32_u24 {v(vTOK)}, 896, v5
    v_lshl_add_u32 v14, v4, 3, {v(vTOK)}
    s_lshl_b32 s3, {s(sEB)}, 1
    """)
    for m in range(4):
        k(f"buffer_load_dwordx2 {v(XT + 2 * m, 2)}, v14, {s(SX, 4)}, s3 offen{off(16 * m)}")
    sF2, sF3 = 38, 39
    k(f"""
    v_cmp_eq_u32 vcc, 0, v1
    v_mov_b32 v14, 0x7ffffffc
    v_mov_b32 v15, 0
    v_cndmask_b32 {v(vFLG)}, v14, 0, vcc
    s_lshr_b32 s3, {s(sQ)}, 1
    s_lshl_b32 s3, s3, 6
    s_and_b32 s40, {s(sQ)}, 1
    s_mul_i32 s40, s40, 28
    s_add_u32 s3, s3, s40
    s_lshl_b32 s40, {s(sR)}, 2
    s_add_u32 s3, s3, s40
    s_add_u32 s3, s3, {s(sW)}
    s_mul_i32 {s(sF2)}, s3, {FS}
    s_add_u32 {s(sF2)}, {s(sF2)}, {FL2}
    s_lshl_b32 s3, {s(sT)}, 6
    s_lshl_b32 s40, {s(sW)}, 4
    s_add_u32 s3, s3, s40
    s_add_u32 s3, s3, {s(sFS)}
    s_mul_i32 {s(sF3)}, s3, {FS}
    s_add_u32 {s(sF3)}, {s(sF3)}, {FL3}
    buffer_store_dword v15, {v(vFLG)}, {s(SWS, 4)}, {s(sF2)} offen sc1
    buffer_store_dword v15, {v(vFLG)}, {s(SWS, 4)}, {s(sF3)} offen sc1
    """)
    k(f"""
    v_lshrrev_b32 v14, 4, v1
    v_lshlrev_b32 v15, 2, v14
    v_and_b32 {v(vWD)}, 15, v1
    v_xor_b32 {v(vWD)}, {v(vWD)}, v15
    v_lshlrev_b32 {v(vWD)}, 4, {v(vWD)}
    v_lshl_add_u32 v14, {s(sW)}, 2, v14
    v_mul_u32_u24 v14, 3584, v14
    v_add_u32 {v(vWD)}, {v(vWD)}, v14
    s_lshl_b32 s3, {s(sFS)}, 8
    v_add_u32 {v(vWD)}, s3, {v(vWD)}
    v_bfe_u32 v14, v1, 2, 2
    v_xor_b32 v15, {s(sW)}, v14
    v_lshlrev_b32 {v(vTR)}, 6, v15
    v_lshl_add_u32 {v(vTR)}, v14, 8, {v(vTR)}
    v_lshl_add_u32 {v(vTR)}, v4, 10, {v(vTR)}
    v_bfe_u32 v14, v1, 4, 1
    v_lshl_add_u32 {v(vTR)}, v14, 5, {v(vTR)}
    v_and_b32 v14, 3, v1
    v_lshl_add_u32 {v(vTR)}, v14, 3, {v(vTR)}
    """)
    WST = 73728
    k(f"v_add_u32 {v(vTR)}, {WST}, {v(vTR)}")
    sWO, sWL = 41, 42
    k(f"s_lshl_b32 {s(sWL)}, {s(sW)}, 10")
    k(f"s_add_u32 {s(sWL)}, {s(sWL)}, {WST}")

    def wdma(n, slot, tag):
        srd = SA if n < 28 else SB_
        return (f"s_add_u32 m0, {s(sWL)}, {slot * 4096}\n"
                f"s_mov_b32 {s(sWO)}, {(n % 28) * 57344}\n"
                f"buffer_load_dwordx4 {v(vWD)}, {s(srd, 4)}, {s(sWO)} offen lds #{tag}")

    def wtr(n, slot):
        va, o = (vTR, slot * 4096) if slot < 15 else (14, (slot - 15) * 4096)
        return (f"ds_read_b64_tr_b16 {a(n * 4, 2)}, {v(va)}{off(o)}\n"
                f"ds_read_b64_tr_b16 {a(n * 4 + 2, 2)}, {v(va)}{off(o + 2048)}")
    nA, nA2 = OPT["nA"], OPT["nA2"]
    nB = 56 - nA - nA2
    assert nA <= 21 and nA2 <= 21 and nB <= 21
    FB = 72
    sh = lines(f"""
    v_cmp_eq_u32 vcc, 0, v3
    s_lshr_b32 s3, {s(sW)}, 1
    s_lshl_b32 s40, s3, 5
    s_lshl_b32 s3, s3, 4
    v_mov_b32 v92, s40
    v_mov_b32 v93, s3
    v_cndmask_b32 v92, v3, v92, vcc
    v_cndmask_b32 v93, v93, 0, vcc
    v_cvt_f32_u32 v92, v92
    v_cvt_f32_u32 v93, v93
    v_mul_f32 v92, {f32(1 / 64)}, v92
    v_mul_f32 v93, {f32(1 / 64)}, v93
    v_lshlrev_b32 v94, 2, v4
    v_cvt_f32_u32 v94, v94
    v_fmac_f32 v93, v94, v92
    """)
    for ks in range(4):
        for pr in range(4):
            t = 96 + 2 * (pr & 1)
            for e in range(2):
                n = pr * 2 + e
                sh.append(f"v_fmamk_f32 {v(t + e)}, v92, {f32(float(16 * ks + (n & 3) + 8 * (n >> 2)))}, v93")
            sh += [f"v_cos_f32 {v(t)}, {v(t)}", f"v_cos_f32 {v(t + 1)}, {v(t + 1)}"]
            if pr & 1:
                sh += [f"v_cvt_pk_f16_f32 {v(FB + ks * 4 + pr - 1)}, v96, v97", f"v_cvt_pk_f16_f32 {v(FB + ks * 4 + pr)}, v98, v99"]
    ZB, OB = 0, 8192
    vZW, vZR, vO0, vO1, vOR, vOG = 100, 101, 102, 103, 104, 105
    sY0, sY1 = 43, 44
    sh += lines(f"""
    v_and_b32 v95, 3, v1
    v_lshlrev_b32 {v(vZW)}, 4, v95
    v_lshl_add_u32 {v(vZW)}, v6, 6, {v(vZW)}
    v_bfe_u32 v96, v1, 2, 1
    v_lshl_add_u32 {v(vZW)}, v96, 12, {v(vZW)}
    v_lshlrev_b32 {v(vZR)}, 8, v4
    v_bfe_u32 v96, v1, 2, 2
    v_lshl_add_u32 {v(vZR)}, v96, 6, {v(vZR)}
    v_bfe_u32 v96, v1, 4, 1
    v_lshl_add_u32 {v(vZR)}, v96, 5, {v(vZR)}
    v_lshl_add_u32 {v(vZR)}, v95, 3, {v(vZR)}
    s_and_b32 s3, {s(sW)}, 1
    s_lshl_b32 s40, s3, 12
    v_add_u32 {v(vZR)}, s40, {v(vZR)}
    s_lshl_b32 s3, s3, 2
    s_lshr_b32 s40, {s(sQ)}, 1
    s_and_b32 s40, s40, 7
    s_xor_b32 s3, s3, s40
    v_xor_b32 {v(vO0)}, s3, v4
    v_xor_b32 {v(vO0)}, {v(vO0)}, v8
    v_xor_b32 {v(vO1)}, 2, {v(vO0)}
    s_lshr_b32 s3, {s(sW)}, 1
    s_lshl_b32 s3, s3, 5
    v_add_u32 v96, s3, v3
    v_lshlrev_b32 v96, 7, v96
    v_lshl_add_u32 {v(vO0)}, {v(vO0)}, 4, v96
    v_lshl_add_u32 {v(vO1)}, {v(vO1)}, 4, v96
    v_lshrrev_b32 v96, 3, v0
    v_and_b32 v97, 7, v96
    v_xor_b32 v97, v97, v8
    v_lshlrev_b32 v97, 4, v97
    v_lshl_add_u32 {v(vOR)}, v96, 7, v97
    v_mul_u32_u24 v96, 57344, v96
    v_lshl_add_u32 {v(vOG)}, v8, 4, v96
    s_lshl_b32 s3, {s(sR)}, 13
    s_lshl_b32 {s(sY0)}, {s(sQ)}, 7
    s_add_u32 {s(sY0)}, {s(sY0)}, s3
    s_add_u32 {s(sY1)}, {s(sY0)}, 4096
    """)
    G.emit(sprinkle(sh, [wdma(n, n, "A") for n in range(nA)], every=max(1, len(sh) // max(nA, 1))))
    k("v_mov_b32 v15, 0")
    k(f"buffer_load_dword v106, v15, {s(SD, 4)}, 0 offen sc1")
    k.stamp(1)
    ST = 88
    for i in range(4):
        k(f"v_mov_b32 {v(ST + i)}, 0")
    k("s_mov_b32 s3, 0x3f803f80")
    for kk in range(7):
        for dw in range(4):
            for i in range(2):
                r = X + (i * 7 + kk) * 4 + dw
                k(f"v_dot2c_f32_bf16 {v(ST + 2 * i)}, s3, {v(r)}")
                k(f"v_dot2c_f32_bf16 {v(ST + 2 * i + 1)}, {v(r)}, {v(r)}")
    k.stamp(2)
    for mod in ("quad_perm:[1,0,3,2]", "quad_perm:[2,3,0,1]", "row_half_mirror"):
        for i in range(4):
            k(f"v_add_f32_dpp {v(ST + i)}, {v(ST + i)}, {v(ST + i)} {mod} row_mask:0xf bank_mask:0xf")
    for op in ("v_mul_f32 {su}, %s, {su}" % f32(1 / 448), "v_mul_f32 {sq}, %s, {sq}" % f32(1 / 448),
               "v_fma_f32 {sq}, -{su}, {su}, {sq}", "v_max_f32 {sq}, 0, {sq}", "v_add_f32 {sq}, %s, {sq}" % f32(1e-5),
               "v_rsq_f32 {sq}, {sq}", "v_mul_f32 {su}, {su}, {sq}"):
        for i in range(2):
            k(op.format(su=v(ST + 2 * i), sq=v(ST + 2 * i + 1)))
    for i in range(2):
        su, sq = ST + 2 * i, ST + 2 * i + 1
        for dw in range(4):
            r = X + (i * 7) * 4 + dw
            k(f"""
            v_lshlrev_b32 v92, 16, {v(r)}
            v_and_b32 v93, 0xffff0000, {v(r)}
            v_fma_f32 v92, v92, {v(sq)}, -{v(su)}
            v_fma_f32 v93, v93, {v(sq)}, -{v(su)}
            v_cvt_pk_f16_f32 {v(r)}, v92, v93
            """)
        k(f"ds_write_b128 {v(vZW)}, {v(X + i * 28, 4)}{off(ZB + i * 512)}")
    k.waitcnt(lg=0)
    k.barrier()
    AF, ACC = 20, 108
    for ks in range(4):
        k(f"ds_read_b64_tr_b16 {v(AF + ks * 4, 2)}, {v(vZR)}{off(ZB + ks * 1024)}")
        k(f"ds_read_b64_tr_b16 {v(AF + ks * 4 + 2, 2)}, {v(vZR)}{off(ZB + ks * 1024 + 512)}")
    for ks in range(4):
        k(f"{MFH} {v(ACC, 16)}, {v(AF + ks * 4, 4)}, {v(FB + ks * 4, 4)}, " + (v(ACC, 16) if ks else "0"))
    for p in range(2):
        for m in range(4):
            k(f"v_cvt_pk_bf16_f32 {v(48 + p * 4 + m)}, {v(ACC + 4 * m + p)}, {v(ACC + 4 * m + 2 + p)}")
        k(f"ds_write_b128 {v(vO0 + p)}, {v(48 + p * 4, 4)} offset:{OB}")
    k.waitcnt(lg=0)
    k.barrier()
    k(f"ds_read_b128 v[56:59], {v(vOR)} offset:{OB}")
    k(f"ds_read_b128 v[60:63], {v(vOR)} offset:{OB + 4096}")
    k(f"buffer_store_dwordx4 v[56:59], {v(vOG)}, {s(SWS, 4)}, {s(sY0)} offen sc1")
    k(f"buffer_store_dwordx4 v[60:63], {v(vOG)}, {s(SWS, 4)}, {s(sY1)} offen sc1")
    k.stamp(3)
    k(f"""
    v_cvt_f32_u32 v92, v5
    v_mul_f32 v92, {f32(1 / 2048)}, v92
    v_mul_f32 v93, v94, v92
    """)
    for q in range(2):
        for pr in range(4):
            for e in range(2):
                n = pr * 2 + e
                k(f"v_fmamk_f32 {v(96 + e)}, v92, {f32(float(16 * q + (n & 3) + 8 * (n >> 2)))}, v93")
            k("v_cos_f32 v98, v96")
            k("v_cos_f32 v99, v97")
            k("v_sin_f32 v96, v96")
            k("v_sin_f32 v97, v97")
            k(f"v_cvt_pk_bf16_f32 {v(TA0 + q * 4 + pr)}, v98, v99")
            k(f"v_cvt_pk_bf16_f32 {v(TB0 + q * 4 + pr)}, v96, v97")
    k.waitcnt(vm=0)
    k.barrier()
    k.stamp(4)
    k(f"s_cmp_lg_u32 {s(sW)}, 0")
    k("s_cbranch_scc1 M_NOPOST1")
    k("v_cmp_eq_u32 vcc, 0, v106")
    k("s_cbranch_vccz M_RDY")
    G.poll([(15, SD, "0")], 1, 45, 106)
    k.label("M_RDY")
    k(f"""
    s_mul_i32 s3, s2, {FS}
    s_add_u32 s3, s3, {FL1}
    v_mov_b32 v15, 1
    buffer_store_dword v15, {v(vFLG)}, {s(SWS, 4)}, s3 offen sc1
    """)
    k.label("M_NOPOST1")
    k.vm = []
    k(f"v_add_u32 v14, {15 * 4096}, {v(vTR)}")
    G.emit([wtr(n, n) for n in range(nA)])
    k(f"s_cmp_eq_u32 {s(sQ)}, 0")
    k("s_cbranch_scc1 M_T0")
    sn = k.snapshot()
    k(f"""
    s_cmp_ge_u32 {s(sW)}, 2
    s_cselect_b32 s3, 0x80008000, 0
    s_cselect_b32 s40, 0, 0x80008000
    """)
    for i in range(8):
        k(f"v_xor_b32 {v(TA1 + i)}, s3, {v(TB0 + i)}")
        k(f"v_xor_b32 {v(TB1 + i)}, s40, {v(TA0 + i)}")
    k("s_branch M_T1")
    k.label("M_T0")
    k.restore(sn)
    k(f"""
    s_cmp_ge_u32 {s(sW)}, 2
    s_cselect_b32 s3, -1, 0
    s_cselect_b32 s40, 0, -1
    """)
    for i in range(8):
        k(f"v_and_b32 {v(TA1 + i)}, s3, {v(TA0 + i)}")
        k(f"v_and_b32 {v(TB1 + i)}, s3, {v(TB0 + i)}")
        k(f"v_and_b32 {v(TA0 + i)}, s40, {v(TA0 + i)}")
        k(f"v_and_b32 {v(TB0 + i)}, s40, {v(TB0 + i)}")
    k.label("M_T1")
    k.waitcnt(lg=0)
    k.barrier()
    G.emit([wdma(nA + n, n, "A2") for n in range(nA2)])
    YB, VB = 16384, 0
    MB, SBF, DCB = 159744, 159744 + 2048, 159744 + 3072
    vY0, vY1 = 6, 7
    k(f"""
    s_and_b32 s3, {s(sW)}, 1
    s_lshl_b32 s3, s3, 1
    v_bfe_u32 {v(vY0)}, v1, 1, 3
    v_xor_b32 {v(vY0)}, {v(vY0)}, v4
    v_xor_b32 {v(vY0)}, s3, {v(vY0)}
    v_xor_b32 {v(vY1)}, 4, {v(vY0)}
    v_lshlrev_b32 v8, 7, v3
    v_add_u32 v8, {YB}, v8
    v_lshl_add_u32 {v(vY0)}, {v(vY0)}, 4, v8
    v_lshl_add_u32 {v(vY1)}, {v(vY1)}, 4, v8
    """)
    k.stamp(5)
    k(f"s_cmp_lg_u32 {s(sW)}, 0")
    k("s_cbranch_scc1 M_NOPOLL1")
    sn = k.snapshot()
    k(f"""
    v_mul_u32_u24 v16, {FS}, v1
    v_min_u32 v17, 27, v1
    v_mul_u32_u24 v17, {FS}, v17
    v_cmp_gt_u32 vcc, 32, v1
    v_cndmask_b32 v18, v16, v17, vcc
    s_mov_b32 s46, {FL1}
    s_mov_b32 s47, {FL1 + 64 * FS}
    s_mov_b32 s48, {FL1 + 128 * FS}
    s_mov_b32 s49, {FL1 + 192 * FS}
    s_mov_b32 s50, {FH2}
    """)
    G.poll([(18, SWS, "s46"), (16, SWS, "s47"), (16, SWS, "s48"), (16, SWS, "s49")], 1, 45, 20)
    k.label("M_NOPOLL1")
    k.restore(sn)
    k.barrier()
    k.stamp(6)
    RF = 16
    k(f"""
    s_mul_i32 s46, {s(sQ)}, 57344
    s_lshl_b32 s47, {s(sW)}, 11
    s_add_u32 s46, s46, s47
    s_add_u32 s47, s47, {YB}
    s_lshl_b32 s48, {s(sR)}, 2
    s_add_u32 s48, s48, {s(sW)}
    s_mul_i32 s48, s48, 14336
    s_add_u32 s48, s48, {WS_RP}
    """)
    for c in range(7):
        G.emit([f"s_mov_b32 m0, s47",
                f"buffer_load_dwordx4 v2, {s(SWS, 4)}, s46 offen sc1 lds #Y{c}",
                f"buffer_load_dwordx4 v2, {s(SWS, 4)}, s46 offen offset:1024 sc1 lds #Y{c}",
                f"buffer_load_dwordx4 {v(RF + c * 8, 4)}, v2, {s(SWS, 4)}, s48 offen sc1",
                f"buffer_load_dwordx4 {v(RF + c * 8 + 4, 4)}, v2, {s(SWS, 4)}, s48 offen offset:1024 sc1"])
        if c < 6:
            k("s_add_u32 s46, s46, 8192")
            k("s_add_u32 s47, s47, 8192")
            k("s_add_u32 s48, s48, 2048")
    YF, ACC = 72, 104
    G.emit(["@wait Y2", "@bar"])
    k.stamp(7)
    seq = [(wd, ri) for wd in range(14) for ri in range(2)]

    def yrd(i):
        wd, ri = seq[i]
        return f"ds_read_b128 {v(YF + (i % 8) * 4, 4)}, {v(vY0 + (wd & 1))}{off(((wd >> 1) * 2 + ri) * 4096)}"
    main = []
    for i in range(6):
        k(yrd(i))
    trs = [wtr(nA + n, n) for n in range(nA2)]
    for i in range(28):
        wd, ri = seq[i]
        t = f"{MF} {v(ACC + 16 * ri, 16)}, {v(YF + (i % 8) * 4, 4)}, {v(RF + wd * 4, 4)}, " + (v(ACC + 16 * ri, 16) if wd else "0")
        if i + 6 < 28:
            if i + 6 == 12:
                t += "\n@wait Y6\n@bar"
            t += "\n" + yrd(i + 6)
        if trs:
            t += "\n" + trs.pop(0)
        main.append(t)
    G.emit(main)
    k(f"""
    v_min_u32 v17, 27, v1
    v_mul_u32_u24 v9, {FS}, v17
    s_mov_b32 s50, {FH2}
    """.replace("v17", "v9"))
    G.poll([(9, SWS, "s50")], 1, 45, 15)
    GA, CB = 136, 152
    k(f"""
    v_lshlrev_b32 v8, 4, v4
    s_lshl_b32 s51, {s(sEB)}, 2
    s_add_u32 s51, s51, {WS_MODF}
    """)
    for m in range(4):
        k(f"buffer_load_dwordx4 {v(GA + 4 * m, 4)}, v8, {s(SWS, 4)}, s51 offen{off(32 * m)} sc1")
    for m in range(4):
        k(f"buffer_load_dwordx4 {v(CB + 4 * m, 4)}, v8, {s(SWS, 4)}, s51 offen offset:{3584 + 32 * m} sc1")
    k(f"""
    s_mov_b32 s3, {WS_MODB + 896}
    v_lshlrev_b32 v15, 3, v0
    buffer_load_dwordx2 v[248:249], v15, {s(SWS, 4)}, s3 offen sc1
    s_lshl_b32 s3, {s(sW)}, 12
    v_add_u32 v9, s3, v2
    """)
    for ri in range(2):
        for m in range(8):
            k(f"v_cvt_pk_bf16_f32 {v(RF + ri * 8 + m)}, {v(ACC + 16 * ri + 2 * m)}, {v(ACC + 16 * ri + 2 * m + 1)}")
        for q in range(2):
            k(f"ds_write_b128 v9, {v(RF + ri * 8 + q * 4, 4)}{off(VB + (ri * 2 + q) * 1024)}")
    k.waitcnt(lg=0)
    k.barrier()
    k.stamp(8)
    order = [(ab, p, ri, q) for ab in range(2) for ri in range(2) for q in range(2) for p in range(2)]
    dst = lambda i: (YF + i * 4) if i < 8 else (RF + 16 + (i - 8) * 4)
    for i, (ab, p, ri, q) in enumerate(order):
        k(f"ds_read_b128 {v(dst(i), 4)}, v2{off(VB + ((ab * 2 + p) * 4 + ri * 2 + q) * 1024)}")
    main = []
    bd = [wdma(nA + nA2 + n, n, "B") for n in range(nB)]
    for i, (ab, p, ri, q) in enumerate(order):
        T = {(0, 0): TA0, (1, 0): TB0, (0, 1): TA1, (1, 1): TB1}[(ab, ri)] + q * 4
        t = f"{MF} {v(ACC + 16 * p, 16)}, {v(dst(i), 4)}, {v(T, 4)}, " + (v(ACC + 16 * p, 16) if i >= 2 else "0")
        if i % 2 == 1 and bd:
            t += "\n" + bd.pop(0)
        main.append(t)
    G.emit(main)
    k(f"""
    s_and_b32 s3, {s(sW)}, 1
    s_cmp_eq_u32 s3, 0
    s_cselect_b32 s3, 1.0, -1.0
    """)
    X1 = 192
    for m in range(4):
        for dw in range(2):
            r = 4 * m + 2 * dw
            k(f"v_lshlrev_b32 {v(X1 + r)}, 16, {v(XT + 2 * m + dw)}")
            k(f"v_and_b32 {v(X1 + r + 1)}, 0xffff0000, {v(XT + 2 * m + dw)}")
    for r in range(16):
        k(f"v_fmac_f32 {v(ACC + r)}, s3, {v(ACC + 16 + r)}")
    k(f"s_cmp_lg_u32 {s(sTB)}, 0")
    k("s_cbranch_scc1 M_NODC")
    sn = k.snapshot()
    k(f"""
    v_mul_u32_u24 v9, {7 * 1792}, v4
    v_lshl_add_u32 v9, v3, 2, v9
    s_lshl_b32 s3, {s(sEB)}, 2
    s_add_u32 s3, s3, {WS_SAH}
    """)
    for i in range(7):
        k(f"buffer_load_dword {v(RF + i)}, v9, {s(SWS, 4)}, s3 offen sc1")
        k("s_add_u32 s3, s3, 1792")
    for i in range(1, 7):
        k(f"v_add_f32 {v(RF)}, {v(RF)}, {v(RF + i)}")
    k(f"""
    v_mov_b32 {v(RF + 1)}, {v(RF)}
    v_permlane32_swap_b32 {v(RF)}, {v(RF + 1)}
    v_add_f32 {v(RF)}, {v(RF)}, {v(RF + 1)}
    v_mul_f32 {v(RF)}, {f32(2048.0)}, {v(RF)}
    s_lshl_b32 s3, {s(sW)}, 7
    s_add_u32 s3, s3, {DCB}
    v_lshl_add_u32 v9, v3, 2, s3
    ds_write_b32 v9, {v(RF)}
    v_lshl_add_u32 v9, v4, 4, s3
    """)
    k.waitcnt(lg=0)
    for m in range(4):
        k(f"ds_read_b128 {v(RF + 4 * m, 4)}, v9{off(32 * m)}")
    k("v_cmp_eq_u32 vcc, 0, v3")
    k("v_cndmask_b32 v9, 0, 1.0, vcc")
    for r in range(16):
        k(f"v_fmac_f32 {v(ACC + r)}, v9, {v(RF + r)}")
    k.waitcnt(vm=0, lg=0)
    k.label("M_NODC")
    k.restore(sn)
    sTM = 46
    k(f"""
    s_lshr_b32 {s(sTM)}, {s(sQ)}, 1
    s_lshl_b32 {s(sTM)}, {s(sTM)}, 2
    s_and_b32 s3, {s(sQ)}, 1
    s_add_u32 {s(sTM)}, {s(sTM)}, s3
    s_and_b32 s3, {s(sW)}, 2
    s_add_u32 s47, {s(sTM)}, s3
    s_mul_i32 s48, s47, 28672
    s_lshl_b32 s3, {s(sEB)}, 6
    s_add_u32 s48, s48, s3
    s_add_u32 s48, s48, {WS_XS}
    s_mul_i32 s47, s47, 3584
    s_lshl_b32 s3, {s(sEB)}, 3
    s_add_u32 s47, s47, s3
    s_add_u32 s47, s47, {WS_ST}
    """)
    for q in range(2):
        for r in range(8 * q, 8 * q + 8):
            k(f"v_fmac_f32 {v(X1 + r)}, {v(GA + r)}, {v(ACC + r)}")
        for r in range(8 * q, 8 * q + 8):
            k(f"v_mul_f32 {v(ACC + r)}, {v(X1 + r)}, {v(CB + r)}")
        for m in range(4 * q, 4 * q + 4):
            k(f"v_cvt_pk_bf16_f32 {v(RF + m)}, {v(ACC + 2 * m)}, {v(ACC + 2 * m + 1)}")
        G.emit([f"buffer_store_dwordx4 {v(RF + 4 * q, 4)}, v2, {s(SWS, 4)}, s48 offen{off(1024 * q)} sc1 #xs"])
    k(f"v_add_f32 v8, {v(X1)}, {v(X1 + 1)}")
    k(f"v_mul_f32 v9, {v(X1)}, {v(X1)}")
    k(f"v_fmac_f32 v9, {v(X1 + 1)}, {v(X1 + 1)}")
    for r in range(2, 16):
        k(f"v_add_f32 v8, v8, {v(X1 + r)}")
        k(f"v_fmac_f32 v9, {v(X1 + r)}, {v(X1 + r)}")
    G.emit(lines(f"""
    v_permlane32_swap_b32 v8, v9
    v_add_f32 v8, v8, v9
    v_lshlrev_b32 v5, 2, v1
    buffer_store_dword v8, v5, {s(SWS, 4)}, s47 offen sc1 #xs
    """))
    k.stamp(9)
    G.emit(bd)
    k(f"v_add_u32 v15, {MB}, v15")
    k("ds_write_b64 v15, v[248:249]")
    G.emit(["@wait xs"])
    k("v_mov_b32 v15, 1")
    k(f"buffer_store_dword v15, {v(vFLG)}, {s(SWS, 4)}, {s(sF2)} offen sc1")
    G.emit(["@wait B", "@lg0", "@bar"])
    k.stamp(10)
    G.emit([wtr(nA + nA2 + n, n) for n in range(nB)])
    ACC, XF = 16, 80
    k(f"""
    v_and_b32 v8, 1, v1
    v_xor_b32 v8, 1, v8
    v_mul_u32_u24 v8, 896, v8
    v_lshl_add_u32 v8, v4, 4, v8
    v_add_u32 v8, {MB}, v8
    """)
    for i in range(6):
        k(f"ds_read_b128 {v(XF + i * 4, 4)}, v8{off(i * 32)}")
    for i in range(28):
        for j in range(2):
            k(f"{MF} {v(ACC + 16 * j, 16)}, {v(XF + (i % 8) * 4, 4)}, {a(112 * j + i * 4, 4)}, " + (v(ACC + 16 * j, 16) if i else "0"))
        if i + 6 < 28:
            k(f"ds_read_b128 {v(XF + ((i + 6) % 8) * 4, 4)}, v8{off((i + 6) * 32)}")
    k.stamp(11)
    k(f"s_cmp_lg_u32 {s(sW)}, 0")
    k("s_cbranch_scc1 M_NOPOLL2")
    sn = k.snapshot()
    k(f"""
    v_min_u32 v8, 55, v1
    v_mul_u32_u24 v8, {FS}, v8
    v_min_u32 v9, 27, v1
    v_mul_u32_u24 v9, {FS}, v9
    s_mul_i32 s47, {s(sT)}, {64 * FS}
    s_add_u32 s47, s47, {FL2}
    s_mov_b32 s48, {FH3}
    """)
    G.poll([(8, SWS, "s47"), (9, SWS, "s48")], 1, 45, 14)
    k.label("M_NOPOLL2")
    k.restore(sn)
    k.waitcnt(lg=0)
    k.barrier()
    k.stamp(12)
    k(f"""
    s_mul_i32 s47, {s(sT)}, 114688
    s_mul_i32 s48, {s(sW)}, 7168
    s_add_u32 s47, s47, s48
    s_add_u32 s47, s47, {WS_XS}
    s_lshl_b32 s49, {s(sT)}, 2
    s_add_u32 s49, s49, {s(sW)}
    s_mul_i32 s49, s49, 3584
    s_add_u32 s49, s49, {WS_ST}
    """)

    def xdma(m):
        L = []
        for i in range(7):
            t = ""
            if i % 4 == 0:
                t += "s_mov_b32 m0, s48\n"
            t += f"buffer_load_dwordx4 v2, {s(SWS, 4)}, s47 offen{off((i % 4) * 1024)} sc1 lds #X{m}"
            if i == 3:
                t += "\ns_add_u32 s47, s47, 4096\ns_add_u32 s48, s48, 4096"
            if i == 6:
                t += f"\ns_add_u32 s47, s47, {28672 - 4096}\ns_add_u32 s48, s48, {28672 - 4096}"
            L.append(t)
        return L
    G.emit(xdma(0))
    SP = 112
    for i in range(14):
        k(f"buffer_load_dword {v(SP + i)}, v5, {s(SWS, 4)}, s49 offen{off(256 * i)} sc1")
    G.emit(xdma(1))
    EA = 128
    k("v_cmp_gt_u32 vcc, 32, v1")
    k("v_cndmask_b32 v9, 0, -1, vcc")
    for j in range(2):
        c1, c2, e = ACC + 16 * j, ACC + 16 * j + 1, EA + 4 * j
        k(f"""
        v_cvt_pk_bf16_f32 {v(e + 1)}, {v(c1)}, {v(c2)}
        v_lshlrev_b32 v6, 16, {v(e + 1)}
        v_and_b32 v7, 0xffff0000, {v(e + 1)}
        v_sub_f32 v14, {v(c1)}, v6
        v_sub_f32 v15, {v(c2)}, v7
        v_cvt_pk_bf16_f32 {v(e)}, v6, v14
        v_cvt_pk_bf16_f32 {v(e + 2)}, v15, v7
        v_and_b32 {v(e)}, v9, {v(e)}
        v_and_b32 {v(e + 1)}, v9, {v(e + 1)}
        v_and_b32 {v(e + 2)}, v9, {v(e + 2)}
        v_mov_b32 {v(e + 3)}, 0
        """)
    sHM, sWT, sHL = 50, 51, 52
    k(f"""
    s_mul_i32 {s(sHM)}, {s(sT)}, {4 * 114688}
    s_mul_i32 s3, {s(sW)}, 28672
    s_add_u32 {s(sHM)}, {s(sHM)}, s3
    s_lshl_b32 s40, {s(sFS)}, 11
    s_add_u32 {s(sHM)}, {s(sHM)}, s40
    s_add_u32 {s(sHM)}, {s(sHM)}, {WS_HM}
    s_mul_i32 {s(sHL)}, {s(sTM)}, 114688
    s_add_u32 {s(sHL)}, {s(sHL)}, s3
    s_add_u32 {s(sHL)}, {s(sHL)}, {WS_HM}
    s_lshl_b32 {s(sWT)}, {s(sR)}, 2
    s_add_u32 {s(sWT)}, {s(sWT)}, {s(sW)}
    s_mul_i32 {s(sWT)}, {s(sWT)}, 57344
    s_add_u32 {s(sWT)}, {s(sWT)}, {WS_WDT}
    v_add_u32 v11, 57344, v2
    """)
    EB, SG, KX, TMP, HO = 136, 152, 156, 160, 176
    st1 = [f"v_add_f32 {v(SP)}, {v(SP)}, {v(SP + i)}" for i in range(1, 14)]
    st1 += lines(f"""
    v_mul_f32 {v(SP)}, {f32(1 / 448)}, {v(SP)}
    v_mov_b32 {v(SP + 1)}, {v(SP)}
    s_lshl_b32 s3, {s(sW)}, 8
    s_add_u32 s3, s3, {SBF}
    v_permlane32_swap_b32 {v(SP)}, {v(SP + 1)}
    v_fma_f32 {v(SP + 1)}, -{v(SP)}, {v(SP)}, {v(SP + 1)}
    v_max_f32 {v(SP + 1)}, 0, {v(SP + 1)}
    v_add_f32 {v(SP + 1)}, {f32(1e-5)}, {v(SP + 1)}
    v_sqrt_f32 {v(SP + 1)}, {v(SP + 1)}
    v_sub_f32 {v(SP)}, 0, {v(SP)}
    v_lshl_add_u32 v8, v3, 3, s3
    ds_write_b64 v8, {v(SP, 2)}
    v_lshlrev_b32 v8, 3, v3
    v_add_u32 v8, {SBF}, v8
    """)
    st2 = [f"ds_read_b64 {v(SP + 2 * m, 2)}, v8{off(256 * m)}" for m in range(4)]
    for m in range(4):
        nm, sg, e = SP + 2 * m, SP + 1 + 2 * m, EB + 4 * m
        st2 += lines(f"""
        v_cvt_pk_bf16_f32 v9, {v(nm)}, {v(sg)}
        v_rcp_f32 {v(KX + m)}, {v(sg)}
        v_lshlrev_b32 v6, 16, v9
        v_and_b32 v7, 0xffff0000, v9
        v_sub_f32 v14, {v(nm)}, v6
        v_sub_f32 v15, {v(sg)}, v7
        v_cvt_pk_bf16_f32 {v(e)}, v6, v6
        v_cvt_pk_bf16_f32 {v(e + 1)}, v14, v7
        v_cvt_pk_bf16_f32 {v(e + 2)}, v7, v15
        v_mov_b32 {v(e + 3)}, 0
        v_mov_b32 {v(SG + m)}, {v(sg)}
        v_mul_f32 {v(KX + m)}, {f32(-1.4426950408889634)}, {v(KX + m)}
        """)

    def epi(m):
        g, u = ACC + 32 * (m & 1), ACC + 32 * (m & 1) + 16
        L = []
        for r0 in range(0, 16, 4):
            rs = range(r0, r0 + 4)
            L += [f"v_mul_f32 {v(TMP + r)}, {v(KX + m)}, {v(g + r)}" for r in rs]
            L += [f"v_exp_f32 {v(TMP + r)}, {v(TMP + r)}" for r in rs]
            L += [f"v_fma_f32 {v(TMP + r)}, {v(TMP + r)}, {v(SG + m)}, {v(SG + m)}" for r in rs]
            L += [f"v_rcp_f32 {v(TMP + r)}, {v(TMP + r)}" for r in rs]
            L += [f"v_mul_f32 {v(TMP + r)}, {v(TMP + r)}, {v(u + r)}" for r in rs]
            L += [f"v_cvt_pk_bf16_f32 {v(HO + r // 2)}, {v(TMP + r)}, {v(TMP + r + 1)}" for r in range(r0, r0 + 4, 2)]
            if r0 == 4:
                L.append(f"buffer_store_dwordx4 {v(HO, 4)}, v2, {s(SWS, 4)}, {s(sHM)} offen sc1 #H{m}")
            if r0 == 12:
                L.append(f"buffer_store_dwordx4 {v(HO + 4, 4)}, v2, {s(SWS, 4)}, {s(sHM)} offen offset:1024 sc1 #H{m}")
                L.append(f"s_add_u32 {s(sHM)}, {s(sHM)}, 114688")
        return L

    def post3(m):
        return f"@wait H{m}\nv_mov_b32 v15, {m + 1}\nbuffer_store_dword v15, {v(vFLG)}, {s(SWS, 4)}, {s(sF3)} offen sc1"

    def xrd(n):
        o = n * 1024
        return f"ds_read_b128 {v(XF + (n % 8) * 4, 4)}, {v(2 if o < 57344 else 11)}{off(o if o < 57344 else o - 57344)}"
    early = [a(224 + 4 * i, 4) for i in range(8)] + [v(208 + 4 * i, 4) for i in range(12)] + [v(184, 4), v(188, 4)]
    NE = len(early)
    home = list(early)
    freed = []
    for ks in range(28):
        freed += [(ks, a(4 * ks, 4)), (ks, a(112 + 4 * ks, 4))]

    def wload(i, reg):
        t = f"buffer_load_dwordx4 {reg}, v2, {s(SWS, 4)}, {s(sWT)} offen{off((i % 4) * 1024)} sc1"
        if i % 4 == 3:
            t += f"\ns_add_u32 {s(sWT)}, {s(sWT)}, 4096"
        return t
    PF = 5
    for m in range(4):
        if m == 0:
            G.emit(["@wait X0", "@bar"])
            k.stamp(13)
            for n in range(PF):
                k(xrd(n))
        g, u = ACC + 32 * (m & 1), ACC + 32 * (m & 1) + 16
        main = []
        for ks in range(28):
            n = m * 28 + ks
            main.append(f"{MF} {v(g, 16)}, {a(ks * 4, 4)}, {v(XF + (n % 8) * 4, 4)}, " + (v(g, 16) if ks else "0"))
            nx = n + PF
            t = f"{MF} {v(u, 16)}, {a(112 + ks * 4, 4)}, {v(XF + (n % 8) * 4, 4)}, " + (v(u, 16) if ks else "0")
            if nx < 112:
                if nx == 56:
                    t += f"\n@wait X3\n@bar"
                t += "\n" + xrd(nx)
            if m == 3 and NE + ks < 56:
                i = len(home)
                home.append(freed[ks][1])
                assert freed[ks][0] <= ks
                t += "\n" + wload(i, home[i])
            main.append(t)
        main.append(f"{MF} {v(g, 16)}, {v(EA, 4)}, {v(EB + 4 * m, 4)}, {v(g, 16)}")
        main.append(f"{MF} {v(u, 16)}, {v(EA + 4, 4)}, {v(EB + 4 * m, 4)}, {v(u, 16)}")
        if m == 0:
            fill = xdma(2) + xdma(3) + st1 + ["@wait X1\n@lg0\n@bar"] + st2
            mg = merge(main, fill, start=0, per=3)
            assert mg.index(fill[-1]) < mg.index(main[-2]) and mg.index("@wait X1\n@lg0\n@bar") < mg.index(main[2 * (28 - PF) + 1])
            G.emit(mg)
        else:
            fill = epi(m - 1)
            if m in (1, 2):
                w = [wload(i, early[i]) for i in range((m - 1) * 11, m * 11)]
                fill = sprinkle(fill, w, every=8)
            G.emit(merge(main, fill, start=3, per=3))
            if m >= 2:
                G.emit([post3(m - 1)])
    k.stamp(14)
    while len(home) < 56:
        i = len(home)
        home.append(freed[i - NE][1])
        G.emit([wload(i, home[i])])
    G.emit(epi(3))
    G.emit([post3(3)])
    HF = [freed[i][1] for i in range(56 - NE, 56)] + [v(80 + 4 * i, 4) for i in range(6)]
    assert len(HF) == 28
    k(f"""
    v_min_u32 v8, 13, v1
    v_mul_u32_u24 v8, {FS}, v8
    s_lshr_b32 s47, {s(sQ)}, 1
    s_lshl_b32 s47, s47, 6
    s_lshl_b32 s3, {s(sW)}, 4
    s_add_u32 s47, s47, s3
    s_mul_i32 s47, s47, {FS}
    s_add_u32 s47, s47, {FL3}
    s_and_b32 s48, {s(sQ)}, 1
    s_add_u32 s48, s48, 3
    """)
    G.poll([(8, SWS, "s47")], "s48", 45, 14)

    def hload(i):
        t = f"buffer_load_dwordx4 {HF[i]}, v2, {s(SWS, 4)}, {s(sHL)} offen{off((i % 4) * 1024)} sc1"
        if i % 4 == 3:
            t += f"\ns_add_u32 {s(sHL)}, {s(sHL)}, 4096"
        return t
    G.emit([hload(i) for i in range(28)])
    k(f"s_add_u32 {s(sHL)}, {s(sHL)}, {2 * 114688 - 28672}")
    GB = 112
    for th in range(2):
        for i in range(28):
            for sg in range(2):
                t = ACC + 16 * (th * 2 + sg)
                k(f"{MF} {v(t, 16)}, {home[i * 2 + sg]}, {HF[i]}, " + (v(t, 16) if i else "0"))
            if th == 0:
                G.emit([hload(i)])
        if th == 0:
            k(f"""
            v_lshlrev_b32 v8, 4, v4
            s_lshl_b32 s3, {s(sEB)}, 2
            s_add_u32 s3, s3, {WS_MODF + 3 * 1792}
            """)
            for m in range(4):
                k(f"buffer_load_dwordx4 {v(GB + 4 * m, 4)}, v8, {s(SWS, 4)}, s3 offen{off(32 * m)} sc1")
    k.barrier()
    k(f"s_lshl_b32 s3, {s(sW)}, 12")
    k("v_add_u32 v9, s3, v2")
    for t in range(4):
        for m in range(4):
            k(f"ds_write_b128 v9, {v(ACC + 16 * t + 4 * m, 4)}{off(t * 16384 + m * 1024)}")
    k(f"s_lshl_b32 s3, {s(sW)}, 14")
    k("v_add_u32 v9, s3, v2")
    k.waitcnt(lg=0)
    k.barrier()
    for w in range(4):
        for m in range(4):
            k(f"ds_read_b128 {v(ACC + 16 * w + 4 * m, 4)}, v9{off(w * 4096 + m * 1024)}")
    for r in range(16):
        k(f"v_add_f32 {v(ACC + r)}, {v(ACC + r)}, {v(ACC + 16 + r)}")
    for r in range(16):
        k(f"v_add_f32 {v(ACC + 32 + r)}, {v(ACC + 32 + r)}, {v(ACC + 48 + r)}")
    for r in range(16):
        k(f"v_add_f32 {v(ACC + r)}, {v(ACC + r)}, {v(ACC + 32 + r)}")
    for r in range(16):
        k(f"v_fmac_f32 {v(X1 + r)}, {v(GB + r)}, {v(ACC + r)}")
    for m in range(8):
        k(f"v_cvt_pk_bf16_f32 {v(ACC + m)}, {v(X1 + 2 * m)}, {v(X1 + 2 * m + 1)}")
    k(f"v_lshl_add_u32 v6, v4, 4, {v(vTOK)}")
    k(f"s_lshl_b32 s3, {s(sEB)}, 1")
    for q in range(2):
        k(f"v_permlane32_swap_b32 {v(ACC + 4 * q)}, {v(ACC + 4 * q + 2)}")
        k(f"v_permlane32_swap_b32 {v(ACC + 4 * q + 1)}, {v(ACC + 4 * q + 3)}")
        k(f"buffer_store_dwordx4 {v(ACC + 4 * q, 4)}, v6, {s(SC, 4)}, s3 offen{off(32 * q)}")
    k.stamp_dump(SWS, WS_DIAG)
    k("s_endpgm")

    k.label("K_HELP")
    k.restore(snap0)
    SWM, SCC, SWD = SA, SB_, SC
    srd_load(k, SWM, "wm")
    srd_load(k, SCC, "c")
    srd_load(k, SWD, "wd")
    for b, n in ((SWS, "ws"), (SD, "dbg"), (SWM, "wm"), (SCC, "c"), (SWD, "wd")):
        srd_fin(k, b, n)
    k(f"""
    v_lshrrev_b32 v5, 6, v0
    v_and_b32 v1, 63, v0
    v_readfirstlane_b32 {s(sW)}, v5
    """)

    def codepf(reg):
        if OPT["codepf"]:
            G.nlab += 1
            k(f"s_getpc_b64 s[52:53]")
            k.label(f"PC{G.nlab}")
            k(f"s_sub_u32 s52, s52, PC{G.nlab}-{NAME}_kernel")
            k("s_subb_u32 s53, s53, 0")
            k(f"v_lshlrev_b32 {v(reg)}, 7, v0")
            k(f"v_min_u32 {v(reg)}, K_LAST-{NAME}_kernel, {v(reg)}")
            k(f"v_mov_b32 {v(reg + 1)}, s53")
            k(f"v_add_co_u32 {v(reg)}, vcc, s52, {v(reg)}")
            k(f"v_addc_co_u32 {v(reg + 1)}, vcc, 0, {v(reg + 1)}, vcc")
            k(f"global_load_dword {v(reg)}, {v(reg, 2)}, off")
    k("s_cmp_lt_u32 s2, 28")
    k("s_cbranch_scc1 H_WORK")
    sn = k.snapshot()
    k("s_cmp_lg_u32 s2, 28")
    k("s_cbranch_scc1 H_IDLE")
    k(f"""
    v_mul_u32_u24 v2, {FS}, v0
    v_mov_b32 v3, 0
    s_mov_b32 s3, {FL1}
    buffer_store_dword v3, v2, {s(SWS, 4)}, s3 offen sc1
    """)
    k.waitcnt(vm=0)
    k.barrier()
    k(f"""
    v_cmp_eq_u32 vcc, 0, v0
    v_mov_b32 v4, 0x7ffffffc
    v_mov_b32 v3, 1
    v_cndmask_b32 v2, v4, 0, vcc
    buffer_store_dword v3, v2, {s(SD, 4)}, 0 offen sc1
    """)
    k.label("H_IDLE")
    k.waitcnt(lg=0)
    codepf(6)
    k("s_endpgm")
    k.label("H_WORK")
    k.restore(sn)
    sH, sWD, sTY = 2, 29, 31
    PR, SE, SBU, RED, BC, WDL = 4096, 32768, 0, 1024, 2048, 90112
    k(f"""
    s_cmp_ge_u32 s2, 14
    s_cselect_b32 {s(sTY)}, 1, 0
    s_cselect_b32 s3, 14, 0
    s_sub_u32 {s(sWD)}, s2, s3
    v_lshlrev_b32 v2, 2, v0
    v_lshrrev_b32 v4, 2, v1
    s_mul_i32 s3, {s(sW)}, 112
    v_add_u32 v4, s3, v4
    v_mul_u32_u24 v4, 5376, v4
    v_and_b32 v5, 3, v1
    v_lshl_add_u32 v4, v5, 4, v4
    s_lshl_b32 s34, {s(sWD)}, 6
    s_cmp_eq_u32 {s(sTY)}, 0
    s_cselect_b32 s3, 896, 0
    s_add_u32 s34, s34, s3
    s_mul_i32 s35, {s(sW)}, 7168
    buffer_load_dword v3, v2, {s(SCC, 4)}, 0 offen
    """)
    for i in range(7):
        G.emit([f"s_add_u32 m0, s35, {PR + i * 1024}",
                f"buffer_load_dwordx4 v4, {s(SWM, 4)}, s34 offen lds #HP",
                f"s_add_u32 s34, s34, {16 * 5376}"])
    codepf(60)
    k(f"""
    v_cmp_eq_u32 vcc, 0, v0
    v_mov_b32 v14, 0x7ffffffc
    v_mov_b32 v15, 0
    v_cndmask_b32 v62, v14, 0, vcc
    s_mul_i32 s38, s2, {FS}
    s_add_u32 s39, s38, {FH2}
    s_add_u32 s40, s38, {FH3}
    s_add_u32 s38, s38, {FL1}
    buffer_store_dword v15, v62, {s(SWS, 4)}, s39 offen sc1
    buffer_store_dword v15, v62, {s(SWS, 4)}, s40 offen sc1
    s_lshl_b32 s34, s2, 7
    s_add_u32 s34, s34, 1792
    s_lshl_b32 s37, s35, 1
    """)
    sec = []
    for i in range(7):
        for j in range(2):
            sec.append(f"s_add_u32 m0, s37, {SE + (i * 2 + j) * 1024}\n"
                       f"buffer_load_dwordx4 v4, {s(SWM, 4)}, s34 offen lds #HS\n"
                       f"s_add_u32 s34, s34, {64 if j == 0 else 16 * 5376 - 64}")
    k(f"""
    v_and_b32 v6, 0xf9, v0
    v_bfe_u32 v7, v0, 1, 1
    v_lshl_add_u32 v6, v7, 2, v6
    v_bfe_u32 v7, v0, 2, 1
    v_lshl_add_u32 v6, v7, 1, v6
    v_lshlrev_b32 v6, 2, v6
    v_lshrrev_b32 v12, 5, v1
    v_lshlrev_b32 v12, 8, v12
    v_bfe_u32 v10, v1, 2, 2
    v_lshl_add_u32 v12, v10, 6, v12
    v_bfe_u32 v10, v1, 4, 1
    v_lshl_add_u32 v12, v10, 5, v12
    v_lshl_add_u32 v12, v5, 3, v12
    v_lshlrev_b32 v7, 16, v3
    v_and_b32 v8, 0xffff0000, v3
    v_mul_f32 v9, {f32(-1.4426950408889634)}, v7
    v_mul_f32 v10, {f32(-1.4426950408889634)}, v8
    v_exp_f32 v9, v9
    v_exp_f32 v10, v10
    v_add_f32 v9, 1.0, v9
    v_add_f32 v10, 1.0, v10
    v_rcp_f32 v9, v9
    v_rcp_f32 v10, v10
    v_mul_f32 v7, v7, v9
    v_mul_f32 v8, v8, v10
    v_cvt_pk_bf16_f32 v7, v7, v8
    ds_write_b32 v6, v7{off(SBU)}
    """)
    TG = 64
    k(f"s_cmp_eq_u32 {s(sTY)}, 1")
    k("s_cbranch_scc1 H_TRB")
    sn2 = k.snapshot()
    k(f"""
    v_lshrrev_b32 v8, 5, v1
    v_lshlrev_b32 v8, 2, v8
    s_lshl_b32 s3, {s(sWD)}, 5
    s_and_b32 s36, {s(sW)}, 1
    s_add_u32 s3, s3, s36
    v_add_u32 v8, s3, v8
    v_cvt_f32_u32 v8, v8
    v_and_b32 v9, 31, v1
    v_cvt_f32_u32 v9, v9
    s_lshr_b32 s36, {s(sW)}, 1
    s_mul_i32 s36, s36, 0x3e800000
    v_mov_b32 v14, s36
    """)
    for n in range(8):
        dn = 2 * (n & 1) + 8 * (n >> 1)
        k(f"""
        v_add_f32 v10, {f32(float(dn))}, v8
        v_mul_f32 v11, v10, v9
        v_fmamk_f32 v11, v11, {f32(1 / 448)}, v14
        v_mul_f32 v10, {f32(1 / 14)}, v10
        v_fract_f32 v10, v10
        """)
        for j in range(7):
            r = TG + j * 8 + n
            if j == 0:
                k(f"v_cos_f32 {v(r)}, v11")
            else:
                k(f"v_fmamk_f32 {v(r)}, v10, {f32(float(j))}, v11")
                k(f"v_cos_f32 {v(r)}, {v(r)}")
    k("s_branch H_TRD")
    k.label("H_TRB")
    k.restore(sn2)
    k(f"""
    v_cvt_f32_u32 v8, v0
    v_cvt_f32_u32 v9, {s(sWD)}
    v_mul_f32 v9, v9, v8
    v_mul_f32 v9, {f32(1 / 14)}, v9
    v_fract_f32 v9, v9
    v_mul_f32 v8, {f32(1 / 448)}, v8
    """)
    for i in range(32):
        k(f"v_fmamk_f32 {v(TG + i)}, v8, {f32(float(i))}, v9")
        k(f"v_cos_f32 {v(TG + i)}, {v(TG + i)}")
    k.label("H_TRD")
    k.stamp(1)
    k(f"buffer_load_dword v63, v15, {s(SD, 4)}, 0 offen sc1")
    k.waitcnt(lg=0)
    k.barrier()
    SF, WF, ACC = 16, 120, 176
    k(f"""
    v_lshrrev_b32 v8, 5, v1
    v_lshlrev_b32 v8, 4, v8
    s_mul_i32 s3, {s(sW)}, 224
    v_add_u32 v8, s3, v8
    v_add_u32 v13, s35, v12
    """)
    for i in range(7):
        k(f"ds_read_b128 {v(SF + i * 4, 4)}, v8{off(SBU + i * 32)}")
    G.emit(["@wait HP"])
    k.stamp(2)
    for i in range(7):
        k(f"ds_read_b64_tr_b16 {v(WF + i * 4, 2)}, v13{off(PR + i * 1024)}")
        k(f"ds_read_b64_tr_b16 {v(WF + i * 4 + 2, 2)}, v13{off(PR + i * 1024 + 512)}")
    for i in range(7):
        k(f"{MF} {v(ACC, 16)}, {v(SF + i * 4, 4)}, {v(WF + i * 4, 4)}, " + (v(ACC, 16) if i else "0"))
    k(f"""
    v_and_b32 v9, 31, v1
    v_lshlrev_b32 v9, 2, v9
    s_lshl_b32 s3, {s(sW)}, 7
    v_add_u32 v10, s3, v9
    ds_write_b32 v10, {v(ACC)} offset:{RED}
    """)
    k.waitcnt(lg=0)
    k.barrier()
    for i in range(4):
        k(f"ds_read_b32 {v(44 + i)}, v9 offset:{RED + i * 128}")
    k("v_add_f32 v44, v44, v45")
    k("v_add_f32 v46, v46, v47")
    k("v_add_f32 v44, v44, v46")
    round_bf16(k, 44, 44)
    k(f"s_cmp_eq_u32 {s(sTY)}, 1")
    k("s_cselect_b32 s3, 0, 1.0")
    k("v_add_f32 v44, s3, v44")
    round_bf16(k, 44, 44)
    k(f"ds_write_b32 v10, v44 offset:{BC}")
    k.waitcnt(lg=0)
    k("s_cbranch_scc1 H_FB")
    sn3 = k.snapshot()
    k(f"""
    v_lshrrev_b32 v8, 5, v1
    v_lshlrev_b32 v8, 4, v8
    s_and_b32 s36, {s(sW)}, 1
    s_lshl_b32 s36, s36, 2
    s_lshl_b32 s3, {s(sW)}, 7
    s_add_u32 s3, s3, s36
    s_add_u32 s3, s3, {BC}
    v_add_u32 v8, s3, v8
    """)
    for m in range(4):
        k(f"ds_read2_b32 {v(48 + 2 * m, 2)}, v8 offset0:{8 * m} offset1:{8 * m + 2}")
    k(f"""
    v_lshlrev_b32 v9, 4, v1
    s_mul_i32 s3, {s(sW)}, 14
    s_add_u32 s3, s3, {s(sWD)}
    s_lshl_b32 s3, s3, 10
    s_add_u32 s3, s3, {WS_RP}
    """)
    for j in range(7):
        for n in range(8):
            k(f"v_mul_f32 {v(TG + j * 8 + n)}, {v(TG + j * 8 + n)}, {v(48 + n)}")
        for m in range(4):
            k(f"v_cvt_pk_bf16_f32 {v(TG + j * 8 + m)}, {v(TG + j * 8 + 2 * m)}, {v(TG + j * 8 + 2 * m + 1)}")
        k(f"buffer_store_dwordx4 {v(TG + j * 8, 4)}, v9, {s(SWS, 4)}, s3 offen sc1")
        k(f"s_add_u32 s3, s3, {56 * 1024}")
    k("s_branch H_FD")
    k.label("H_FB")
    k.restore(sn3)
    k(f"s_lshl_b32 s3, {s(sW)}, 7")
    k(f"v_mov_b32 v8, s3")
    for m in range(8):
        k(f"ds_read_b128 {v(192 + 4 * m, 4)}, v8 offset:{BC + 16 * m}")
    k(f"v_mul_f32 v10, {v(TG)}, v192")
    k(f"v_mul_f32 v11, {v(TG + 1)}, v193")
    for i in range(2, 32):
        k(f"v_fmac_f32 {v(10 + (i & 1))}, {v(TG + i)}, {v(192 + i)}")
    k(f"""
    v_add_f32 v44, v10, v11
    v_sub_f32 v45, v10, v11
    s_mul_i32 s3, {s(sWD)}, 1792
    s_add_u32 s3, s3, {WS_SAH}
    v_cmp_gt_u32 vcc, 224, v0
    v_cndmask_b32 v9, -1, v2, vcc
    v_and_b32 v9, 0x7ffffffc, v9
    buffer_store_dword v44, v9, {s(SWS, 4)}, s3 offen sc1
    buffer_store_dword v45, v9, {s(SWS, 4)}, s3 offen offset:896 sc1
    """)
    k.label("H_FD")
    k.vm = []
    G.emit(sec)
    k.waitcnt(vm=14)
    k.barrier()
    k.stamp(3)
    k(f"s_cmp_lg_u32 {s(sW)}, 0")
    k("s_cbranch_scc1 H_NOPOST1")
    sn = k.snapshot()
    k("v_cmp_eq_u32 vcc, 0, v63")
    k("s_cbranch_vccz H_RDY")
    G.poll([(15, SD, "0")], 1, 45, 63)
    k.label("H_RDY")
    k("v_mov_b32 v14, 1")
    k(f"buffer_store_dword v14, v62, {s(SWS, 4)}, s38 offen sc1")
    k.label("H_NOPOST1")
    k.restore(sn)
    k.waitcnt(vm=0)
    k(f"""
    v_lshlrev_b32 v9, 4, v1
    s_mul_i32 s34, s2, 57344
    s_add_u32 s34, s34, s37
    s_add_u32 s36, s37, {WDL}
    """)
    for i in range(14):
        if i % 4 == 0:
            k("s_mov_b32 m0, s36")
        G.emit([f"buffer_load_dwordx4 v9, {s(SWD, 4)}, s34 offen{off((i % 4) * 1024)} lds #HW"])
        if i % 4 == 3:
            k("s_add_u32 s34, s34, 4096")
            k("s_add_u32 s36, s36, 4096")
    k("v_add_u32 v13, s37, v12")
    for i in range(14):
        k(f"ds_read_b64_tr_b16 {v(WF + i * 4, 2)}, v13{off(SE + i * 1024)}")
        k(f"ds_read_b64_tr_b16 {v(WF + i * 4 + 2, 2)}, v13{off(SE + i * 1024 + 512)}")
    for i in range(7):
        for j in range(2):
            k(f"{MF} {v(ACC + 16 * j, 16)}, {v(SF + i * 4, 4)}, {v(WF + (i * 2 + j) * 4, 4)}, " + (v(ACC + 16 * j, 16) if i else "0"))
    k(f"""
    v_cmp_gt_u32 vcc, 32, v1
    v_cndmask_b32 v44, {v(ACC + 16)}, {v(ACC)}, vcc
    ds_write_b32 v2, v44{off(SBU)}
    """)
    k.waitcnt(lg=0)
    k.barrier()
    k(f"s_cmp_lg_u32 {s(sW)}, 0")
    k("s_cbranch_scc1 H_NOSEC")
    sn = k.snapshot()
    for i in range(4):
        k(f"ds_read_b32 {v(44 + i)}, v2{off(SBU + i * 256)}")
    k("v_add_f32 v44, v44, v45")
    k("v_add_f32 v46, v46, v47")
    k("v_add_f32 v44, v44, v46")
    round_bf16(k, 44, 44)
    k(f"""
    s_sub_u32 s3, s2, 14
    s_cmp_lt_u32 s3, 7
    s_cselect_b32 s3, 1.0, 0
    v_add_f32 v44, s3, v44
    """)
    round_bf16(k, 44, 44)
    k(f"""
    s_lshl_b32 s3, s2, 8
    s_add_u32 s3, s3, {WS_MODF}
    buffer_store_dword v44, v2, {s(SWS, 4)}, s3 offen sc1
    v_and_b32 v6, 0x33, v1
    v_bfe_u32 v7, v1, 2, 1
    v_lshl_add_u32 v6, v7, 3, v6
    v_bfe_u32 v7, v1, 3, 1
    v_lshl_add_u32 v6, v7, 2, v6
    v_lshlrev_b32 v6, 1, v6
    s_lshl_b32 s3, s2, 7
    s_add_u32 s3, s3, {WS_MODB}
    buffer_store_short_d16_hi v44, v6, {s(SWS, 4)}, s3 offen sc1
    v_mov_b32 v14, 1
    """)
    k.waitcnt(vm=0)
    k(f"buffer_store_dword v14, v62, {s(SWS, 4)}, s39 offen sc1")
    k.label("H_NOSEC")
    k.restore(sn)
    k.stamp(4)
    k(f"""
    v_lshrrev_b32 v13, 5, v1
    v_lshlrev_b32 v13, 2, v13
    v_bfe_u32 v10, v1, 2, 2
    v_add_u32 v13, v13, v10
    v_mul_u32_u24 v13, 896, v13
    v_bfe_u32 v10, v1, 4, 1
    v_lshl_add_u32 v13, v10, 5, v13
    v_lshl_add_u32 v13, v5, 3, v13
    s_add_u32 s3, s37, {WDL}
    v_add_u32 v13, s3, v13
    s_and_b32 s3, s2, 1
    s_lshl_b32 s3, s3, 1
    s_lshr_b32 s36, {s(sW)}, 1
    s_add_u32 s3, s3, s36
    s_mul_i32 s34, s3, 57344
    s_lshr_b32 s3, s2, 1
    s_lshl_b32 s3, s3, 12
    s_add_u32 s34, s34, s3
    s_and_b32 s3, {s(sW)}, 1
    s_lshl_b32 s3, s3, 11
    s_add_u32 s34, s34, s3
    s_add_u32 s34, s34, {WS_WDT}
    """)
    k.waitcnt(vm=0)
    for cb in range(14):
        k(f"ds_read_b64_tr_b16 {v(WF + cb * 4, 2)}, v13{off(cb * 64)}")
        k(f"ds_read_b64_tr_b16 {v(WF + cb * 4 + 2, 2)}, v13{off(cb * 64 + 8 * 896)}")
    for j in range(7):
        for sg in range(2):
            k(f"buffer_store_dwordx4 {v(WF + (j + 7 * sg) * 4, 4)}, v9, {s(SWS, 4)}, s34 offen{off(1024 * sg)} sc1")
        k(f"s_add_u32 s34, s34, {4 * 57344}")
    k.waitcnt(vm=0)
    k.barrier()
    k("v_mov_b32 v14, 1")
    k(f"buffer_store_dword v14, v62, {s(SWS, 4)}, s40 offen sc1")
    k.nst = 5
    k.stamp_dump(SWS, WS_DIAG)
    k.label("K_END")
    k.label("K_LAST")
    k("s_endpgm")
    return k, 163840


def build(k, lds, extra=()):
    ref = open(f"cdna_kernels/{NAME}.s.ref").read().split("\n")
    head = [l for l in ref if l.startswith(";") and "@launch" not in l and "Override launch" not in l and "grid=ceil" not in l]
    out = list(head)
    kernels = [(NAME + "_kernel", (k, lds), 256)] + list(extra)
    if extra:
        for name, (kk, l), grid in kernels:
            out.append(f"; @launch kernel={name} grid=({grid},1,1) block=(256,1,1) lds={l}")
    else:
        out.append(f"; @launch grid=(256,1,1) block=(256,1,1) lds={lds}")
    out.append('.amdgcn_target "amdgcn-amd-amdhsa--gfx950"')
    out.append(".text")
    for name, (kk, l), grid in kernels:
        out += [f".globl {name}", ".p2align 8", f".type {name},@function", f"{name}:", kk.text()]
    out.append('.section .rodata,"a"')
    for name, (kk, l), grid in kernels:
        acc = (kk.maxv + 4) // 4 * 4
        nfv = acc + kk.maxa + 1 if kk.maxa >= 0 else kk.maxv + 1
        out += [".p2align 6", f".amdhsa_kernel {name}",
                f"  .amdhsa_next_free_vgpr {nfv}", f"  .amdhsa_next_free_sgpr {max(kk.maxs + 1, 16)}",
                f"  .amdhsa_accum_offset {acc}", "  .amdhsa_group_segment_fixed_size 0",
                "  .amdhsa_kernarg_size 112", "  .amdhsa_user_sgpr_count 2",
                "  .amdhsa_user_sgpr_kernarg_segment_ptr 1", "  .amdhsa_system_sgpr_workgroup_id_x 1",
                "  .amdhsa_float_denorm_mode_32 3",
                ".end_amdhsa_kernel"]
    return "\n".join(out) + "\n"


if __name__ == "__main__":
    args = sys.argv[2:]
    if "stamps" in args:
        Kern.STAMPS = True
    for x in args:
        if "=" in x:
            n, val = x.split("=")
            OPT[n] = int(val)
    k, lds = gen()
    print("lines", len(k.out), "nops", k.nops, "maxv", k.maxv, "maxa", k.maxa, "maxs", k.maxs, file=sys.stderr)
    open(sys.argv[1], "w").write(build(k, lds))
```

```python
import re

TRANS = ("v_exp_f32", "v_log_f32", "v_rcp_f32", "v_rsq_f32", "v_sqrt_f32", "v_sin_f32", "v_cos_f32")
RMW = ("v_fmac_f32", "v_dot2c_f32_bf16", "v_dot2c_f32_f16", "v_pk_fmac_f16")


def regs_of(tok):
    tok = tok.strip()
    tok = tok.lstrip("-")
    if tok.startswith("abs(") and tok.endswith(")"):
        tok = tok[4:-1]
    if tok.startswith("|") and tok.endswith("|"):
        tok = tok[1:-1]
    m = re.fullmatch(r"([vsa])\[(\d+):(\d+)\]", tok)
    if m:
        return [(m.group(1), i) for i in range(int(m.group(2)), int(m.group(3)) + 1)]
    m = re.fullmatch(r"([vsa])(\d+)", tok)
    if m:
        return [(m.group(1), int(m.group(2)))]
    if tok == "vcc":
        return [("s", "vcc_lo"), ("s", "vcc_hi")]
    if tok in ("vcc_lo", "vcc_hi"):
        return [("s", tok)]
    if tok == "exec":
        return [("s", "exec")]
    if tok == "m0":
        return [("s", "m0")]
    return []


def split_ops(rest):
    out, depth, cur = [], 0, ""
    for ch in rest:
        if ch in "[(":
            depth += 1
        if ch in "])":
            depth -= 1
        if ch == "," and depth == 0:
            out.append(cur.strip())
            cur = ""
        else:
            cur += ch
    if cur.strip():
        out.append(cur.strip())
    return out


class Ins:
    def __init__(self, text):
        self.text = text
        t = text.split(";")[0].strip()
        parts = t.split(None, 1)
        self.op = parts[0]
        rest = parts[1] if len(parts) > 1 else ""
        ops = split_ops(rest)
        mods = ""
        if ops:
            last = ops[-1].split(None, 1)
            ops[-1] = last[0]
            mods = last[1] if len(last) > 1 else ""
        self.ops, self.mods = ops, mods
        op = self.op
        base = re.sub(r"_(e32|e64|dpp|sdwa)$", "", op)
        self.base = base
        self.defs, self.uses = [], []
        self.cls = "other"
        self.passes = 0
        self.mf_a = self.mf_b = self.mf_c = []
        self.store_data = []
        R = regs_of
        if op.startswith("v_mfma"):
            self.cls = "mfma"
            self.defs = R(ops[0])
            self.mf_a, self.mf_b, self.mf_c = R(ops[1]), R(ops[2]), R(ops[3])
            self.uses = self.mf_a + self.mf_b + self.mf_c
            self.passes = 8 if "32x32x16" in op else 4
            assert "32x32x16" in op or "16x16x32" in op
        elif op.startswith("v_"):
            self.cls = "valu"
            if base.startswith("v_permlane") and "swap" in base:
                self.defs = R(ops[0]) + R(ops[1])
                self.uses = R(ops[0]) + R(ops[1])
            elif base in ("v_add_co_u32", "v_sub_co_u32", "v_addc_co_u32"):
                self.defs = R(ops[0]) + R(ops[1])
                self.uses = sum((R(o) for o in ops[2:]), [])
            elif base == "v_nop":
                pass
            else:
                self.defs = R(ops[0])
                self.uses = sum((R(o) for o in ops[1:]), [])
                if base in RMW or op.endswith("_dpp") or "dst_unused:UNUSED_PRESERVE" in mods or base == "v_writelane_b32":
                    self.uses += R(ops[0])
                if base.startswith("v_cmpx"):
                    self.defs += [("s", "exec")]
        elif op.startswith("ds_"):
            self.cls = "ds"
            if op.startswith("ds_read") or op.startswith("ds_bpermute") or op.startswith("ds_swizzle") or "_rtn_" in op:
                self.defs = R(ops[0])
                self.uses = sum((R(o) for o in ops[1:]), [])
            else:
                self.uses = sum((R(o) for o in ops), [])
        elif op.startswith("buffer_") or op.startswith("global_"):
            self.cls = "vmem"
            allmods = " " + mods + " "
            if op in ("buffer_inv", "buffer_wbl2"):
                pass
            elif " lds " in allmods or "_lds_" in op:
                self.uses = sum((R(o) for o in ops), []) + [("s", "m0")]
            elif "load" in op:
                self.defs = R(ops[0])
                self.uses = sum((R(o) for o in ops[1:]), [])
                if "d16" in op:
                    self.uses += R(ops[0])
            elif "atomic" in op:
                self.uses = sum((R(o) for o in ops), [])
                if " sc0 " in allmods:
                    self.defs = R(ops[0])
            else:
                self.uses = sum((R(o) for o in ops), [])
                d = R(ops[0]) if op.startswith("buffer_") else R(ops[1])
                if len(d) >= 3:
                    self.store_data = d
        elif op.startswith("s_load") or op in ("s_memtime", "s_memrealtime"):
            self.cls = "smem"
            self.defs = R(ops[0])
            self.uses = sum((R(o) for o in ops[1:]), [])
        elif op.startswith("s_"):
            self.cls = "salu"
            if op.startswith("s_cmp") or op.startswith("s_bitcmp"):
                self.uses = sum((R(o) for o in ops), [])
            elif op in ("s_nop", "s_waitcnt", "s_barrier", "s_endpgm", "s_sleep", "s_setprio", "s_branch") or op.startswith("s_cbranch"):
                pass
            else:
                self.defs = R(ops[0])
                self.uses = sum((R(o) for o in ops[1:]), [])
                if "saveexec" in op:
                    self.defs += [("s", "exec")]
                if op in ("s_addk_i32", "s_mulk_i32"):
                    self.uses += R(ops[0])
        else:
            raise ValueError("unknown instruction " + text)
        self.states = 1
        if op == "s_nop":
            self.states = int(ops[0]) + 1
        self.is_trans = base in TRANS
        self.is_dot = base.startswith("v_dot")
        self.is_dpp = op.endswith("_dpp")
        self.is_perml = base.startswith("v_permlane")
        self.is_rdlane = base in ("v_readfirstlane_b32", "v_readlane_b32")


def need_states(p, c):
    n = 0
    pd, cu, cd = set(p.defs), set(c.uses), set(c.defs)
    vec = lambda s: {r for r in s if r[0] in "va"}
    sca = lambda s: {r for r in s if r[0] == "s"}
    if p.cls == "valu":
        raw = vec(pd) & cu
        if raw:
            if c.cls == "mfma":
                n = max(n, 2)
            if c.is_dpp or c.is_perml:
                n = max(n, 2)
            if c.is_rdlane:
                n = max(n, 1)
            if p.is_trans and c.cls in ("valu",) and not c.is_trans:
                n = max(n, 1)
            if p.is_trans and c.cls != "valu":
                n = max(n, 1)
            if ("op_sel" in p.mods or p.op.endswith("_sdwa")) and c.cls == "valu":
                n = max(n, 1)
        if p.is_dot and (vec(pd) & (cu | cd)):
            if c.base == p.base and not (vec(pd) & set(sum((regs_of(o) for o in c.ops[1:3]), []))):
                pass
            else:
                n = max(n, 3)
        sraw = sca(pd) & cu
        if sraw:
            if c.cls == "vmem":
                n = max(n, 5)
            if c.cls == "valu":
                n = max(n, 4 if c.base in ("v_readlane_b32", "v_writelane_b32") else 2)
            if c.cls in ("salu", "smem"):
                n = max(n, 1)
        if ("s", "exec") in pd:
            if c.is_dpp:
                n = max(n, 5)
            if c.cls == "mfma" or c.is_rdlane or c.is_perml:
                n = max(n, 4)
        if (("s", "vcc_lo") in pd) and c.op in ("s_cbranch_vccz", "s_cbranch_vccnz"):
            n = max(n, 1)
    if p.cls == "mfma":
        big = {8: 12, 4: 8}[p.passes]
        if c.cls == "mfma":
            if pd & (set(c.mf_a) | set(c.mf_b)):
                n = max(n, big)
            if pd & set(c.mf_c):
                if not (c.mf_c == p.defs and c.passes == p.passes):
                    n = max(n, {8: 10, 4: 6}[p.passes])
            elif pd & cd:
                n = max(n, {8: 10, 4: 6}[p.passes])
        else:
            if pd & (cu | cd):
                n = max(n, big)
            if c.cls == "valu" and set(p.mf_c) & cd:
                n = max(n, {8: 7, 4: 3}[p.passes])
    if p.cls == "salu" and ("s", "m0") in pd and ("s", "m0") in cu and c.cls == "vmem":
        n = max(n, 1)
    if p.store_data and set(p.store_data) & cd:
        n = max(n, 2)
    return n


class Kern:
    def __init__(self):
        self.out = []
        self.hist = []
        self.vm = []
        self.lg = []
        self.nid = 0
        self.alt = []
        self.altn = 0
        self.pend = {}
        self.seen = set()
        self.nops = 0
        self.maxv = -1
        self.maxa = -1
        self.maxs = -1

    def raw(self, text):
        self.out.append(text)

    def comment(self, text):
        self.out.append("    ; " + text)

    def _append(self, ins):
        self.out.append("    " + ins.text)
        self.hist.append(ins)
        if len(self.hist) > 24:
            self.hist.pop(0)
        for h in self.alt:
            h.append(ins)
        self.altn += 1
        if self.altn > 24:
            self.alt = []
        if ins.op == "s_branch" or ins.op.startswith("s_cbranch"):
            if ins.ops[0] not in self.seen:
                self.pend.setdefault(ins.ops[0], []).append(self.snapshot())
        for r in ins.defs + ins.uses:
            if isinstance(r[1], int):
                if r[0] == "v":
                    self.maxv = max(self.maxv, r[1])
                    assert r[1] < 256, ins.text
                elif r[0] == "a":
                    self.maxa = max(self.maxa, r[1])
                    assert r[1] < 256, ins.text
                else:
                    self.maxs = max(self.maxs, r[1])
                    assert r[1] < 102, ins.text

    def _apply_wait(self, vm=None, lg=None):
        if vm is not None and len(self.vm) > vm:
            self.vm = self.vm[len(self.vm) - vm:] if vm else []
        if lg is not None and len(self.lg) > lg:
            if lg and any(o["smem"] for o in self.lg):
                return
            self.lg = self.lg[len(self.lg) - lg:] if lg else []

    def waitcnt(self, vm=None, lg=None):
        parts = []
        if vm is not None:
            assert vm <= 63
            parts.append(f"vmcnt({vm})")
        if lg is not None:
            assert lg <= 15
            parts.append(f"lgkmcnt({lg})")
        if not parts:
            return
        self._append(Ins("s_waitcnt " + " ".join(parts)))
        self._apply_wait(vm, lg)

    def wait_ids(self, ids):
        if not isinstance(ids, (list, tuple, set)):
            ids = [ids]
        ids = set(ids)
        vm = lg = None
        for i, o in enumerate(self.vm):
            if o["ids"] & ids:
                vm = len(self.vm) - 1 - i
        for i, o in enumerate(self.lg):
            if o["ids"] & ids:
                lg = len(self.lg) - 1 - i
        if lg is not None and any(o["smem"] for o in self.lg):
            lg = 0
        if vm is not None:
            vm = min(vm, 62)
        if lg is not None:
            lg = min(lg, 14)
        self.waitcnt(vm, lg)

    def I(self, text):
        ins = Ins(text)
        if ins.op == "s_waitcnt":
            m = re.search(r"vmcnt\((\d+)\)", text)
            m2 = re.search(r"lgkmcnt\((\d+)\)", text)
            self.waitcnt(int(m.group(1)) if m else None, int(m2.group(1)) if m2 else None)
            return None
        touched = set(ins.uses) | set(ins.defs)
        ids = [i for o in self.vm + self.lg if touched & o["defs"] for i in o["ids"]]
        if ids:
            self.wait_ids(ids)
        need = 0
        for hist in [self.hist] + self.alt:
            dist = 0
            for p in reversed(hist):
                n = need_states(p, ins)
                if n > dist:
                    need = max(need, n - dist)
                dist += p.states
                if dist >= 20:
                    break
        while need > 0:
            k = min(need, 16)
            self._append(Ins(f"s_nop {k - 1}"))
            self.nops += 1
            need -= k
        self._append(ins)
        if ins.cls == "vmem":
            self.nid += 1
            self.vm.append(dict(ids={self.nid}, defs=set(ins.defs), smem=False))
            return self.nid
        if ins.cls in ("ds", "smem"):
            self.nid += 1
            self.lg.append(dict(ids={self.nid}, defs=set(ins.defs), smem=ins.cls == "smem"))
            return self.nid
        return None

    def __call__(self, text):
        last = None
        for line in text.split("\n"):
            line = line.strip()
            if line and not line.startswith(";"):
                last = self.I(line)
        return last

    def label(self, name):
        self.out.append(name + ":")
        self.seen.add(name)
        srcs = list(self.pend.pop(name, []))
        last = self.hist[-1].op if self.hist else None
        if last not in ("s_branch", "s_endpgm") or not srcs:
            srcs.append(self.snapshot())

        def mergeq(qs):
            n = max(len(q) for q in qs)
            best = {}
            for q in qs:
                for i, o in enumerate(q):
                    y = len(q) - 1 - i
                    for d in o["ids"]:
                        if d not in best or y < best[d][0]:
                            best[d] = (y, o)
            slots = [dict(ids=set(), defs=set(), smem=False) for _ in range(n)]
            for d, (y, o) in best.items():
                sl = slots[n - 1 - y]
                sl["ids"].add(d)
                sl["defs"] |= o["defs"]
                sl["smem"] |= o["smem"]
            return slots
        self.vm = mergeq([x[0] for x in srcs])
        self.lg = mergeq([x[1] for x in srcs])
        hs = []
        for x in srcs:
            hs.append(list(x[2]))
            hs += [list(h) for h in x[3]]
        self.hist, self.alt, self.altn = hs[0], hs[1:], 0

    def pad(self, n=16):
        self._append(Ins(f"s_nop {n - 1}"))

    def snapshot(self):
        return ([dict(o) for o in self.vm], [dict(o) for o in self.lg], list(self.hist), [list(h) for h in self.alt])

    def restore(self, snap):
        pass

    STAMPS = False

    def stamp(self, i):
        if self.STAMPS:
            self.I(f"s_memrealtime s[{60 + 2 * i}:{61 + 2 * i}]")
            self.nst = max(getattr(self, "nst", 0), i + 1)

    def stamp_dump(self, srd, off, vt=2):
        if self.STAMPS:
            self.waitcnt(vm=0, lg=0)
            self.I("s_memrealtime s[90:91]")
            self.I(f"v_lshrrev_b32 v{vt}, 6, v0")
            self.I(f"v_lshlrev_b32 v{vt}, 6, v{vt}")
            self.I("s_lshl_b32 s3, s2, 8")
            self.I(f"s_add_u32 s3, s3, {off}")
            for i in list(range(self.nst)) + [15]:
                self.I(f"v_mov_b32 v{vt + 1}, s{60 + 2 * i}")
                self.I(f"buffer_store_dword v{vt + 1}, v{vt}, s[{srd}:{srd + 3}], s3 offen offset:{4 * i}")

    def barrier(self):
        self.I("s_barrier")

    def text(self):
        return "\n".join(self.out)


def v(i, n=1):
    return f"v{i}" if n == 1 else f"v[{i}:{i + n - 1}]"


def a(i, n=1):
    return f"a{i}" if n == 1 else f"a[{i}:{i + n - 1}]"


def s(i, n=1):
    return f"s{i}" if n == 1 else f"s[{i}:{i + n - 1}]"


def f32(x):
    import struct
    return "0x%08x" % struct.unpack("<I", struct.pack("<f", x))[0]
```

```python
import sys
from dsl import *

NAME = "adaLN_cond__spectral_fnet__glu_gated_glu__prompt"
S_, D_, F_ = 2048, 448, 1792
WS_Y = 0x000000
WS_RP = 0x1C0000
WS_MODF = 0x222000
WS_MODB = 0x224000
WS_SAH = 0x225000
SAH_LAYOUT = 2
WS_ST = 0x230000
WS_FL = 0x270000
WS_XS = 0x2C0000
WS_WDT = 0x480000
WS_HM = 0x610000
WS_DIAG = 0x1300000
WS_SIZE = 0x10000000
FS = 128
FL1 = WS_FL
FL2 = WS_FL + 256 * FS
FL3 = FL2 + 1024 * FS
KA = dict(x=0, wg=48, wu=56, wd=64, c=72, wm=80, out=88, dbg=96, ws=104)
SZ = dict(x=S_ * D_ * 2, wg=D_ * F_ * 2, wu=D_ * F_ * 2, wd=D_ * F_ * 2, c=D_ * 2, wm=D_ * 6 * D_ * 2,
          out=S_ * D_ * 2, dbg=256, ws=WS_SIZE)
MF = "v_mfma_f32_32x32x16_bf16"
MFH = "v_mfma_f32_32x32x16_f16"
SPIN_MAX = 20000
HM_LAYOUT = 2

OPT = dict(nE=3, codepf=1, par=1, outmod=0)


def srd_load(k, base, name):
    k(f"s_load_dwordx2 {s(base, 2)}, s[0:1], {KA[name]}")


def srd_fin(k, base, name):
    k(f"s_mov_b32 {s(base + 2)}, {SZ[name]}")
    k(f"s_mov_b32 {s(base + 3)}, 0x00020000")


def round_bf16(k, vd, vs):
    k(f"v_cvt_pk_bf16_f32 {v(vd)}, {v(vs)}, {v(vs)}")
    k(f"v_and_b32 {v(vd)}, 0xffff0000, {v(vd)}")


def off(n):
    return f" offset:{n}" if n else ""


def lines(txt):
    return [l.strip() for l in txt.split("\n") if l.strip()]


def cost(l):
    return 2 if any(l.startswith(t) for t in TRANS) else 1


def merge(main, fill, start=0, per=4):
    out = []
    fi = 0
    for i, m_ in enumerate(main):
        out.append(m_)
        if i >= start:
            c = 0
            while fi < len(fill) and c < per:
                out.append(fill[fi])
                c += sum(cost(l) for l in fill[fi].split("\n"))
                fi += 1
    out += fill[fi:]
    return out


def merge2(main, fill, start=0, budget=5):
    out = []
    fi = 0
    for i, m_ in enumerate(main):
        out.append(m_)
        c = sum(cost(l) for l in m_.split("\n")[1:])
        if i >= start:
            while fi < len(fill):
                cc = sum(cost(l) for l in fill[fi].split("\n"))
                if c + cc > budget and c > 0:
                    break
                out.append(fill[fi])
                c += cc
                fi += 1
    out += fill[fi:]
    return out


def sprinkle(main, items, every, start=0):
    out = []
    it = list(items)
    for i, m_ in enumerate(main):
        out.append(m_)
        if i >= start and (i - start) % every == every - 1 and it:
            out.append(it.pop(0))
    return out + it


class Gen:
    def __init__(self):
        self.k = Kern()
        self.tags = {}
        self.nlab = 0

    def emit(self, items):
        k = self.k
        for item in items:
            for l in item.split("\n"):
                l = l.strip()
                if not l:
                    continue
                if l.startswith("@wait "):
                    k.wait_ids(self.tags.get(l[6:], []))
                elif l == "@bar":
                    k.barrier()
                elif l == "@lg0":
                    k.waitcnt(lg=0)
                elif l.startswith("@stamp "):
                    k.stamp(int(l[7:]))
                elif l.startswith("@call "):
                    getattr(self, l[6:].split()[0])(*l[6:].split()[1:])
                elif "#" in l:
                    t, tag = l.split("#")
                    self.tags.setdefault(tag.strip(), []).append(k(t))
                else:
                    k(l)

    def poll(self, loads, val, scnt, vtmp):
        k = self.k
        self.nlab += 1
        L = f"POLL{self.nlab}"
        k(f"s_mov_b32 {s(scnt)}, 0")
        k.label(L)
        for i, (va, srd, so) in enumerate(loads):
            k(f"buffer_load_dword {v(vtmp + i)}, {v(va)}, {s(srd, 4)}, {so} offen sc1")
        k.waitcnt(vm=0)
        for i in range(1, len(loads)):
            k(f"v_min_u32 {v(vtmp)}, {v(vtmp)}, {v(vtmp + i)}")
        k(f"v_cmp_gt_u32 vcc, {val}, {v(vtmp)}")
        k(f"s_add_u32 {s(scnt)}, {s(scnt)}, 1")
        k(f"s_cbranch_vccz {L}D")
        k(f"s_cmp_lt_u32 {s(scnt)}, {SPIN_MAX}")
        k(f"s_cbranch_scc1 {L}")
        k.label(L + "D")


def gen():
    G = Gen()
    k = G.k
    SX, SWS, SA, SB_, SC, SD = 4, 8, 12, 16, 20, 24
    sQ, sR, sW, sT, sFS, sTB, sEB = 28, 29, 30, 31, 32, 33, 34
    LOG2E = 1.4426950408889634
    k("s_cmp_ge_u32 s2, 256")
    k("s_cbranch_scc1 K_END")
    k.stamp(0)
    srd_load(k, SX, "x")
    srd_load(k, SWS, "ws")
    srd_load(k, SD, "dbg")
    k("s_cmp_lt_u32 s2, 32")
    k("s_cbranch_scc1 K_HELP")
    snap0 = k.snapshot()
    srd_load(k, SA, "wg")
    srd_load(k, SB_, "wu")
    srd_load(k, SC, "out")
    srd_fin(k, SX, "x")
    k(f"""
    v_lshrrev_b32 v5, 6, v0
    v_and_b32 v1, 63, v0
    v_readfirstlane_b32 {s(sW)}, v5
    s_lshr_b32 {s(sR)}, s2, 3
    s_sub_u32 {s(sR)}, {s(sR)}, 4
    s_mul_i32 {s(sQ)}, {s(sR)}, 37
    s_lshr_b32 {s(sQ)}, {s(sQ)}, 8
    s_mul_i32 s3, {s(sQ)}, 7
    s_sub_u32 {s(sR)}, {s(sR)}, s3
    s_and_b32 s3, s2, 7
    s_lshl_b32 s3, s3, 2
    s_add_u32 {s(sQ)}, {s(sQ)}, s3
    v_lshrrev_b32 v6, 3, v1
    v_lshl_add_u32 v6, v5, 4, v6
    v_mul_u32_u24 v7, 28672, v6
    v_and_b32 v8, 7, v1
    v_lshl_add_u32 v7, v8, 4, v7
    v_add_u32 v9, 229376, v7
    s_mul_i32 s36, {s(sQ)}, 896
    s_lshl_b32 s35, {s(sR)}, 7
    s_add_u32 s35, s35, s36
    s_add_u32 s37, s36, 896
    """)
    X = 16
    for kk in range(7):
        for i in range(2):
            k(f"buffer_load_dwordx4 {v(X + (i * 7 + kk) * 4, 4)}, {v(7 if i == 0 else 9)}, {s(SX, 4)}, s35 offen")
        if kk < 6:
            k("s_add_u32 s35, s35, 128")
            k("s_cmp_eq_u32 s35, s37")
            k("s_cselect_b32 s35, s36, s35")
    for b, n in ((SWS, "ws"), (SD, "dbg"), (SA, "wg"), (SB_, "wu"), (SC, "out")):
        srd_fin(k, b, n)
    sTB1 = 35
    k(f"""
    s_and_b32 s3, s2, 1
    s_mul_i32 s3, s3, 7
    s_add_u32 {s(sFS)}, {s(sR)}, s3
    s_and_b32 s3, {s(sQ)}, 3
    s_lshr_b32 {s(sT)}, {s(sQ)}, 3
    s_lshl_b32 {s(sT)}, {s(sT)}, 2
    s_add_u32 {s(sT)}, {s(sT)}, s3
    s_sub_u32 {s(sTB1)}, 64, {s(sQ)}
    s_cmp_eq_u32 {s(sQ)}, 0
    s_cselect_b32 {s(sTB1)}, 32, {s(sTB1)}
    s_cmp_ge_u32 {s(sW)}, 2
    s_cselect_b32 {s(sTB)}, {s(sTB1)}, {s(sQ)}
    s_and_b32 s3, {s(sW)}, 1
    s_mul_i32 s3, s3, 224
    s_lshl_b32 {s(sEB)}, {s(sR)}, 5
    s_add_u32 {s(sEB)}, {s(sEB)}, s3
    v_lshlrev_b32 v2, 4, v1
    v_and_b32 v3, 31, v1
    v_lshrrev_b32 v4, 5, v1
    """)
    vWD, vFLG = 11, 13
    vTR = [12, 14, 10]
    XT = 240
    TA0, TB0, TA1, TB1 = 208, 216, 224, 232
    WST = 16384
    sWO, sWL = 41, 42
    sF2, sF3 = 38, 39
    MB, SBF, DCB, CNT = 159744, 159744 + 2048, 159744 + 3072, 159744 + 3584
    ZB, OB = 0, 8192
    vZW = 100
    k(f"""
    v_lshrrev_b32 v92, 4, v1
    v_lshlrev_b32 v93, 2, v92
    v_and_b32 {v(vWD)}, 15, v1
    v_xor_b32 {v(vWD)}, {v(vWD)}, v93
    v_lshlrev_b32 {v(vWD)}, 4, {v(vWD)}
    v_lshl_add_u32 v92, {s(sW)}, 2, v92
    v_mul_u32_u24 v92, 3584, v92
    s_lshl_b32 s3, {s(sFS)}, 8
    v_add3_u32 {v(vWD)}, {v(vWD)}, v92, s3
    s_lshl_b32 {s(sWL)}, {s(sW)}, 10
    s_add_u32 {s(sWL)}, {s(sWL)}, {WST}
    v_and_b32 v95, 3, v1
    v_lshlrev_b32 {v(vZW)}, 4, v95
    v_lshl_add_u32 {v(vZW)}, v6, 6, {v(vZW)}
    v_bfe_u32 v96, v1, 2, 1
    v_lshl_add_u32 {v(vZW)}, v96, 12, {v(vZW)}
    v_lshl_add_u32 v5, v3, 6, {s(sTB)}
    v_lshlrev_b32 v94, 2, v4
    v_cvt_f32_u32 v94, v94
    """)

    def wdma(n, slot, tag):
        srd = SA if n < 28 else SB_
        return (f"s_add_u32 m0, {s(sWL)}, {slot * 4096}\n"
                f"s_mov_b32 {s(sWO)}, {(n % 28) * 57344}\n"
                f"buffer_load_dwordx4 {v(vWD)}, {s(srd, 4)}, {s(sWO)} offen lds #{tag}")

    def wdma2(n):
        srd = SA if n < 28 else SB_
        return (f"s_add_u32 m0, {s(sWL)}, {n * 4096 - 2048}\n"
                f"s_mov_b32 {s(sWO)}, {(n % 28) * 57344}\n"
                f"buffer_load_dwordx4 v101, {s(srd, 4)}, {s(sWO)} offen lds\n"
                f"buffer_load_dwordx4 v102, {s(srd, 4)}, {s(sWO)} offen offset:2048 lds")

    def wtr(n, slot):
        va, o = vTR[slot // 16], (slot % 16) * 4096
        return (f"ds_read_b64_tr_b16 {a(n * 4, 2)}, {v(va)}{off(o)}\n"
                f"ds_read_b64_tr_b16 {a(n * 4 + 2, 2)}, {v(va)}{off(o + 2048)}")
    nA, nB, nE = 35, 21, OPT["nE"]
    FB = 72
    vZR, vO, vOR, vOG = 101, 102, 106, 107
    sY0 = 43
    def stats():
        k.stamp(1)
        ST = 88
        for i in range(4):
            k(f"v_mov_b32 {v(ST + i)}, 0")
        k("s_mov_b32 s3, 0x3f803f80")
        for kk in range(7):
            for dw in range(4):
                for i in range(2):
                    r = X + (i * 7 + kk) * 4 + dw
                    k(f"v_dot2c_f32_bf16 {v(ST + 2 * i)}, s3, {v(r)}")
                    k(f"v_dot2c_f32_bf16 {v(ST + 2 * i + 1)}, {v(r)}, {v(r)}")
        k.stamp(2)
        for mod in ("quad_perm:[1,0,3,2]", "quad_perm:[2,3,0,1]", "row_half_mirror"):
            for i in range(4):
                k(f"v_add_f32_dpp {v(ST + i)}, {v(ST + i)}, {v(ST + i)} {mod} row_mask:0xf bank_mask:0xf")
        for op in ("v_mul_f32 {su}, %s, {su}" % f32(1 / 448), "v_mul_f32 {sq}, %s, {sq}" % f32(1 / 448),
                   "v_fma_f32 {sq}, -{su}, {su}, {sq}", "v_max_f32 {sq}, 0, {sq}", "v_add_f32 {sq}, %s, {sq}" % f32(1e-5),
                   "v_rsq_f32 {sq}, {sq}", "v_mul_f32 {su}, {su}, {sq}"):
            for i in range(2):
                k(op.format(su=v(ST + 2 * i), sq=v(ST + 2 * i + 1)))
        for i in range(2):
            su, sq = ST + 2 * i, ST + 2 * i + 1
            for dw in range(4):
                r = X + (i * 7) * 4 + dw
                k(f"""
                v_lshlrev_b32 v92, 16, {v(r)}
                v_and_b32 v93, 0xffff0000, {v(r)}
                v_fma_f32 v92, v92, {v(sq)}, -{v(su)}
                v_fma_f32 v93, v93, {v(sq)}, -{v(su)}
                v_cvt_pk_f16_f32 {v(r)}, v92, v93
                """)
            k(f"ds_write_b128 {v(vZW)}, {v(X + i * 28, 4)}{off(ZB + i * 512)}")
        k.waitcnt(lg=0)
        k.barrier()

    def tgen():
        k(f"""
        v_cvt_f32_u32 v92, v5
        v_mul_f32 v92, {f32(1 / 2048)}, v92
        v_mul_f32 v93, v94, v92
        """)
        for q in range(2):
            for pr in range(4):
                for e in range(2):
                    n = pr * 2 + e
                    k(f"v_fmamk_f32 {v(96 + e)}, v92, {f32(float(16 * q + (n & 3) + 8 * (n >> 2)))}, v93")
                k("v_cos_f32 v98, v96")
                k("v_cos_f32 v99, v97")
                k("v_sin_f32 v96, v96")
                k("v_sin_f32 v97, v97")
                k(f"v_cvt_pk_bf16_f32 {v(TA0 + q * 4 + pr)}, v98, v99")
                k(f"v_cvt_pk_bf16_f32 {v(TB0 + q * 4 + pr)}, v96, v97")
    k(f"s_cmp_ge_u32 {s(sW)}, 2")
    k("s_cbranch_scc1 M_LD1")
    sn = k.snapshot()
    k(f"""
    v_cmp_gt_u32 vcc, 4, v1
    v_mov_b32 v92, 0x7ffffffc
    v_mov_b32 v15, 0
    v_mul_u32_u24 v93, {FS}, v1
    v_mul_u32_u24 v96, {16 * FS}, v1
    v_cndmask_b32 v93, v92, v93, vcc
    v_cndmask_b32 v96, v92, v96, vcc
    s_lshr_b32 s3, {s(sQ)}, 1
    s_lshl_b32 s3, s3, 6
    s_and_b32 s40, {s(sQ)}, 1
    s_mul_i32 s40, s40, 28
    s_add_u32 s3, s3, s40
    s_lshl_b32 s40, {s(sR)}, 2
    s_add_u32 s3, s3, s40
    s_mul_i32 s3, s3, {FS}
    s_add_u32 s3, s3, {FL2}
    s_lshl_b32 s40, {s(sT)}, 6
    s_add_u32 s40, s40, {s(sFS)}
    s_mul_i32 s40, s40, {FS}
    s_add_u32 s40, s40, {FL3}
    buffer_store_dword v15, v93, {s(SWS, 4)}, s3 offen sc1
    buffer_store_dword v15, v96, {s(SWS, 4)}, s40 offen sc1
    v_mov_b32 v92, {CNT}
    ds_write_b32 v92, v15
    v_cmp_eq_u32 vcc, 0, v3
    s_lshl_b32 s40, {s(sW)}, 5
    s_lshl_b32 s3, {s(sW)}, 4
    v_mov_b32 v92, s40
    v_mov_b32 v93, s3
    v_cndmask_b32 v92, v3, v92, vcc
    v_cndmask_b32 v93, v93, 0, vcc
    v_cvt_f32_u32 v92, v92
    v_cvt_f32_u32 v93, v93
    v_mul_f32 v92, {f32(1 / 64)}, v92
    v_mul_f32 v93, {f32(1 / 64)}, v93
    v_fmac_f32 v93, v94, v92
    """)
    for ks in range(4):
        for pr in range(4):
            t = 96 + 2 * (pr & 1)
            for e in range(2):
                n = pr * 2 + e
                k(f"v_fmamk_f32 {v(t + e)}, v92, {f32(float(16 * ks + (n & 3) + 8 * (n >> 2)))}, v93")
            k(f"v_cos_f32 {v(t)}, {v(t)}")
            k(f"v_cos_f32 {v(t + 1)}, {v(t + 1)}")
            if pr & 1:
                k(f"v_cvt_pk_f16_f32 {v(FB + ks * 4 + pr - 1)}, v96, v97")
                k(f"v_cvt_pk_f16_f32 {v(FB + ks * 4 + pr)}, v98, v99")
    k(f"""
    v_lshlrev_b32 {v(vZR)}, 8, v4
    v_bfe_u32 v96, v1, 2, 2
    v_lshl_add_u32 {v(vZR)}, v96, 6, {v(vZR)}
    v_bfe_u32 v96, v1, 4, 1
    v_lshl_add_u32 {v(vZR)}, v96, 5, {v(vZR)}
    v_lshl_add_u32 {v(vZR)}, v95, 3, {v(vZR)}
    s_lshr_b32 s40, {s(sQ)}, 1
    s_and_b32 s40, s40, 7
    v_xor_b32 v97, s40, v4
    v_xor_b32 v97, v97, v8
    s_lshl_b32 s3, {s(sW)}, 12
    s_add_u32 s3, s3, {OB}
    v_lshl_add_u32 v96, v3, 7, s3
    v_lshl_add_u32 {v(vO)}, v97, 4, v96
    v_xor_b32 {v(vO + 1)}, 32, {v(vO)}
    v_xor_b32 {v(vO + 2)}, 64, {v(vO)}
    v_xor_b32 {v(vO + 3)}, 96, {v(vO)}
    v_lshrrev_b32 v96, 3, v1
    v_xor_b32 v97, v96, v8
    v_lshlrev_b32 v97, 4, v97
    v_lshl_add_u32 {v(vOR)}, v96, 7, v97
    v_add_u32 {v(vOR)}, s3, {v(vOR)}
    v_mul_u32_u24 v96, 57344, v96
    v_lshl_add_u32 {v(vOG)}, v8, 4, v96
    s_lshl_b32 s3, {s(sR)}, 13
    s_lshl_b32 {s(sY0)}, {s(sQ)}, 7
    s_add_u32 {s(sY0)}, {s(sY0)}, s3
    s_lshl_b32 s3, {s(sW)}, 12
    s_add_u32 {s(sY0)}, {s(sY0)}, s3
    """)
    stats()
    AF, ACC = 16, 108
    for ks in range(4):
        for wdl in range(2):
            k(f"ds_read_b64_tr_b16 {v(AF + (ks * 2 + wdl) * 4, 2)}, {v(vZR)}{off(ZB + wdl * 4096 + ks * 1024)}")
            k(f"ds_read_b64_tr_b16 {v(AF + (ks * 2 + wdl) * 4 + 2, 2)}, {v(vZR)}{off(ZB + wdl * 4096 + ks * 1024 + 512)}")
    k(f"buffer_load_dword v9, v15, {s(SD, 4)}, 0 offen sc1")
    for ks in range(4):
        for wdl in range(2):
            k(f"{MFH} {v(ACC + 16 * wdl, 16)}, {v(AF + (ks * 2 + wdl) * 4, 4)}, {v(FB + ks * 4, 4)}, " + (v(ACC + 16 * wdl, 16) if ks else "0"))
    for wdl in range(2):
        for p in range(2):
            o = 48 + (wdl * 2 + p) * 4
            for m in range(4):
                k(f"v_cvt_pk_bf16_f32 {v(o + m)}, {v(ACC + 16 * wdl + 4 * m + p)}, {v(ACC + 16 * wdl + 4 * m + 2 + p)}")
            k(f"ds_write_b128 {v(vO + wdl * 2 + p)}, {v(o, 4)}")
    k.waitcnt(lg=0)
    for i in range(4):
        k(f"ds_read_b128 {v(16 + 4 * i, 4)}, {v(vOR)}{off(i * 1024)}")
    for i in range(4):
        k(f"buffer_store_dwordx4 {v(16 + 4 * i, 4)}, {v(vOG)}, {s(SWS, 4)}, {s(sY0)} offen sc1")
        if i < 3:
            k(f"s_add_u32 {s(sY0)}, {s(sY0)}, {8 * 57344}")
    k.stamp(3)
    tgen()
    k("v_cmp_eq_u32 vcc, 0, v9")
    k("s_cbranch_vccz M_RDY")
    G.poll([(15, SD, "0")], 1, 45, 9)
    k.label("M_RDY")
    k(f"""
    v_cmp_eq_u32 vcc, 0, v1
    v_mov_b32 v92, {CNT}
    v_cndmask_b32 v93, 0, 1, vcc
    s_mul_i32 s3, s2, {FS}
    s_add_u32 s3, s3, {FL1}
    """)
    k.waitcnt(vm=0)
    k("ds_add_rtn_u32 v96, v92, v93")
    k(f"""
    v_readfirstlane_b32 s40, v96
    v_mov_b32 v92, 0x7ffffffc
    v_cndmask_b32 v92, v92, 0, vcc
    s_cmp_eq_u32 s40, 0
    s_cbranch_scc1 M_LD2D
    buffer_store_dword v93, v92, {s(SWS, 4)}, s3 offen sc1
    s_branch M_LD2D
    """)
    k.label("M_LD1")
    k.restore(sn)
    k(f"v_subrev_u32 v101, 28672, {v(vWD)}")
    k(f"v_subrev_u32 v102, 2048, {v(vWD)}")
    G.emit([wdma2(n) for n in range(nE)])
    stats()
    G.emit([wdma2(n) for n in range(nE, nA)])
    k.stamp(3)
    tgen()
    k.waitcnt(vm=0)
    k.label("M_LD2D")
    k.stamp(4)
    k.barrier()
    k(f"""
    v_min_u32 v9, 27, v1
    v_mul_u32_u24 v9, {FS}, v9
    s_mov_b32 s50, {FL1}
    buffer_load_dword v15, v9, {s(SWS, 4)}, s50 offen sc1
    v_mul_u32_u24 v6, 896, v5
    v_lshl_add_u32 v6, v4, 3, v6
    s_lshl_b32 s3, {s(sEB)}, 1
    """)
    for m in range(4):
        k(f"buffer_load_dwordx2 {v(XT + 2 * m, 2)}, v6, {s(SX, 4)}, s3 offen{off(16 * m)}")
    k(f"""
    v_bfe_u32 v92, v1, 2, 2
    v_xor_b32 v93, {s(sW)}, v92
    v_lshlrev_b32 {v(vTR[0])}, 6, v93
    v_lshl_add_u32 {v(vTR[0])}, v92, 8, {v(vTR[0])}
    v_lshl_add_u32 {v(vTR[0])}, v4, 10, {v(vTR[0])}
    v_bfe_u32 v92, v1, 4, 1
    v_lshl_add_u32 {v(vTR[0])}, v92, 5, {v(vTR[0])}
    v_lshl_add_u32 {v(vTR[0])}, v95, 3, {v(vTR[0])}
    v_add_u32 {v(vTR[1])}, {WST + 65536}, {v(vTR[0])}
    v_add_u32 {v(vTR[2])}, {WST + 131072}, {v(vTR[0])}
    v_add_u32 {v(vTR[0])}, {WST}, {v(vTR[0])}
    """)
    G.emit([wtr(n, n) for n in range(nA)])
    k("v_cmp_gt_u32 vcc, 1, v15")
    k("s_cbranch_vccz M_H1")
    sn = k.snapshot()
    G.poll([(9, SWS, "s50")], 1, 45, 15)
    k.label("M_H1")
    k.restore(sn)
    RF, GA, CB = 16, 136, 152
    k(f"""
    s_lshl_b32 s48, {s(sR)}, 2
    s_add_u32 s48, s48, {s(sW)}
    s_mul_i32 s48, s48, 14336
    s_add_u32 s48, s48, {WS_RP}
    s_mov_b32 s3, {WS_MODB + 896}
    v_lshlrev_b32 v15, 3, v0
    buffer_load_dwordx2 v[248:249], v15, {s(SWS, 4)}, s3 offen sc1
    """)
    for i in range(14):
        k(f"buffer_load_dwordx4 {v(RF + i * 4, 4)}, v2, {s(SWS, 4)}, s48 offen{off((i % 4) * 1024)} sc1")
        if i % 4 == 3:
            k("s_add_u32 s48, s48, 4096")
    k(f"""
    v_lshlrev_b32 v8, 4, v4
    s_lshl_b32 s51, {s(sEB)}, 2
    s_add_u32 s51, s51, {WS_MODF}
    """)
    for m in range(4):
        k(f"buffer_load_dwordx4 {v(GA + 4 * m, 4)}, v8, {s(SWS, 4)}, s51 offen{off(32 * m)} sc1")
    for m in range(4):
        k(f"buffer_load_dwordx4 {v(CB + 4 * m, 4)}, v8, {s(SWS, 4)}, s51 offen offset:{3584 + 32 * m} sc1")
    k(f"s_cmp_eq_u32 {s(sQ)}, 0")
    k("s_cbranch_scc1 M_T0")
    sn = k.snapshot()
    k(f"""
    s_cmp_ge_u32 {s(sW)}, 2
    s_cselect_b32 s3, 0x80008000, 0
    s_cselect_b32 s40, 0, 0x80008000
    """)
    for i in range(8):
        k(f"v_xor_b32 {v(TA1 + i)}, s3, {v(TB0 + i)}")
        k(f"v_xor_b32 {v(TB1 + i)}, s40, {v(TA0 + i)}")
    k("s_branch M_T1")
    k.label("M_T0")
    k.restore(sn)
    k(f"""
    s_cmp_ge_u32 {s(sW)}, 2
    s_cselect_b32 s3, -1, 0
    s_cselect_b32 s40, 0, -1
    """)
    for i in range(8):
        k(f"v_and_b32 {v(TA1 + i)}, s3, {v(TA0 + i)}")
        k(f"v_and_b32 {v(TB1 + i)}, s3, {v(TB0 + i)}")
        k(f"v_and_b32 {v(TA0 + i)}, s40, {v(TA0 + i)}")
        k(f"v_and_b32 {v(TB0 + i)}, s40, {v(TB0 + i)}")
    k.label("M_T1")
    YB, VB = 16384, 0
    vY0, vY1 = 6, 7
    X1 = 192
    k(f"""
    s_and_b32 s3, {s(sW)}, 1
    s_lshl_b32 s3, s3, 1
    v_bfe_u32 {v(vY0)}, v1, 1, 3
    v_xor_b32 {v(vY0)}, {v(vY0)}, v4
    v_xor_b32 {v(vY0)}, s3, {v(vY0)}
    v_xor_b32 {v(vY1)}, 4, {v(vY0)}
    v_lshlrev_b32 v8, 7, v3
    v_add_u32 v8, {YB}, v8
    v_lshl_add_u32 {v(vY0)}, {v(vY0)}, 4, v8
    v_lshl_add_u32 {v(vY1)}, {v(vY1)}, 4, v8
    v_cmp_eq_u32 vcc, 0, v1
    v_mov_b32 v8, 0x7ffffffc
    v_cndmask_b32 {v(vFLG)}, v8, 0, vcc
    s_lshr_b32 s3, {s(sQ)}, 1
    s_lshl_b32 s3, s3, 6
    s_and_b32 s40, {s(sQ)}, 1
    s_mul_i32 s40, s40, 28
    s_add_u32 s3, s3, s40
    s_lshl_b32 s40, {s(sR)}, 2
    s_add_u32 s3, s3, s40
    s_add_u32 s3, s3, {s(sW)}
    s_mul_i32 {s(sF2)}, s3, {FS}
    s_add_u32 {s(sF2)}, {s(sF2)}, {FL2}
    s_lshl_b32 s3, {s(sT)}, 6
    s_lshl_b32 s40, {s(sW)}, 4
    s_add_u32 s3, s3, s40
    s_add_u32 s3, s3, {s(sFS)}
    s_mul_i32 {s(sF3)}, s3, {FS}
    s_add_u32 {s(sF3)}, {s(sF3)}, {FL3}
    s_mul_i32 s46, {s(sQ)}, 57344
    s_lshl_b32 s47, {s(sW)}, 11
    s_add_u32 s46, s46, s47
    s_add_u32 s47, s47, {YB}
    v_add_u32 v15, {MB}, v15
    ds_write_b64 v15, v[248:249]
    """)
    for m in range(4):
        for dw in range(2):
            r = 4 * m + 2 * dw
            k(f"v_lshlrev_b32 {v(X1 + r)}, 16, {v(XT + 2 * m + dw)}")
            k(f"v_and_b32 {v(X1 + r + 1)}, 0xffff0000, {v(XT + 2 * m + dw)}")
    k.stamp(5)
    k(f"s_cmp_lg_u32 {s(sW)}, 0")
    k("s_cbranch_scc1 M_NOPOLL1")
    sn = k.snapshot()
    k(f"""
    v_mul_u32_u24 v72, {FS}, v1
    s_mov_b32 s52, {FL1 + 32 * FS}
    s_mov_b32 s53, {FL1 + 96 * FS}
    s_mov_b32 s54, {FL1 + 160 * FS}
    s_mov_b32 s55, {FL1 + 192 * FS}
    """)
    G.poll([(72, SWS, "s52"), (72, SWS, "s53"), (72, SWS, "s54"), (72, SWS, "s55")], 1, 45, 76)
    k.label("M_NOPOLL1")
    k.restore(sn)
    k.waitcnt(lg=0)
    k.barrier()
    k.stamp(6)
    for c in range(7):
        G.emit([f"s_mov_b32 m0, s47",
                f"s_add_u32 s47, s47, 8192",
                f"buffer_load_dwordx4 v2, {s(SWS, 4)}, s46 offen sc1 lds #Y{c}",
                f"buffer_load_dwordx4 v2, {s(SWS, 4)}, s46 offen offset:1024 sc1 lds #Y{c}",
                f"s_add_u32 s46, s46, 8192"])
    YF, ACC = 72, 104
    CG = 168
    EA = 184

    def cvec(j, acc, ring):
        L = [f"ds_read_b128 {v(ring + i * 4, 4)}, v8{off(i * 32)}" for i in range(6)]
        for i in range(28):
            t = f"{MF} {v(acc, 16)}, {v(ring + (i % 8) * 4, 4)}, {a(112 * j + i * 4, 4)}, " + (v(acc, 16) if i else "0")
            if i + 6 < 28:
                t += f"\nds_read_b128 {v(ring + ((i + 6) % 8) * 4, 4)}, v8{off((i + 6) * 32)}"
            L.append(t)
        return L

    def cfin(j, acc, t0):
        c1, c2, e = acc, acc + 1, EA + 4 * j
        return lines(f"""
        v_cmp_gt_u32 vcc, 32, v1
        v_cvt_pk_bf16_f32 {v(e + 1)}, {v(c1)}, {v(c2)}
        v_cndmask_b32 {v(t0)}, 0, -1, vcc
        v_lshlrev_b32 {v(t0 + 1)}, 16, {v(e + 1)}
        v_and_b32 {v(t0 + 2)}, 0xffff0000, {v(e + 1)}
        v_sub_f32 {v(t0 + 3)}, {v(c1)}, {v(t0 + 1)}
        v_sub_f32 {v(t0 + 4)}, {v(c2)}, {v(t0 + 2)}
        v_cvt_pk_bf16_f32 {v(e)}, {v(t0 + 1)}, {v(t0 + 3)}
        v_cvt_pk_bf16_f32 {v(e + 2)}, {v(t0 + 4)}, {v(t0 + 2)}
        v_and_b32 {v(e)}, {v(t0)}, {v(e)}
        v_and_b32 {v(e + 1)}, {v(t0)}, {v(e + 1)}
        v_and_b32 {v(e + 2)}, {v(t0)}, {v(e + 2)}
        v_mov_b32 {v(e + 3)}, 0
        """)
    cad = lines(f"""
    v_and_b32 v8, 1, v1
    v_xor_b32 v8, 1, v8
    v_mul_u32_u24 v8, 896, v8
    v_lshl_add_u32 v8, v4, 4, v8
    v_add_u32 v8, {MB}, v8
    """)
    G.emit(cad)
    G.emit(cvec(0, CG, YF))
    k(f"s_cmp_lg_u32 {s(sTB)}, 0")
    k("s_cbranch_scc1 M_NODC")
    sn = k.snapshot()
    k(f"v_min_u32 v9, 13, v1")
    k(f"v_mul_u32_u24 v9, {FS}, v9")
    G.poll([(9, SWS, "s50")], 2, 45, 15)
    k(f"""
    v_mul_u32_u24 v9, {14 * 896}, v4
    v_lshl_add_u32 v9, v3, 2, v9
    s_lshl_b32 s3, {s(sR)}, 7
    s_add_u32 s3, s3, {WS_SAH}
    """)
    for i in range(14):
        k(f"buffer_load_dword {v(ACC + i)}, v9, {s(SWS, 4)}, s3 offen{off((i % 4) * 896)} sc1")
        if i % 4 == 3:
            k("s_add_u32 s3, s3, 3584")
    for i in range(1, 14):
        k(f"v_add_f32 {v(ACC)}, {v(ACC)}, {v(ACC + i)}")
    k(f"""
    v_mov_b32 {v(ACC + 1)}, {v(ACC)}
    s_cmp_eq_u32 {s(sW)}, 0
    s_cselect_b32 s40, 1.0, -1.0
    v_permlane32_swap_b32 {v(ACC)}, {v(ACC + 1)}
    v_fmac_f32 {v(ACC)}, s40, {v(ACC + 1)}
    v_mul_f32 {v(ACC)}, {f32(2048.0)}, {v(ACC)}
    s_lshl_b32 s3, {s(sW)}, 7
    s_add_u32 s3, s3, {DCB}
    v_lshl_add_u32 v9, v3, 2, s3
    ds_write_b32 v9, {v(ACC)}
    v_lshl_add_u32 v9, v4, 4, s3
    """)
    k.waitcnt(lg=0)
    for m in range(4):
        k(f"ds_read_b128 {v(ACC + 4 * m, 4)}, v9{off(32 * m)}")
    k("v_cmp_eq_u32 vcc, 0, v3")
    for r in range(16):
        k(f"v_cndmask_b32 {v(ACC + r)}, 0, {v(ACC + r)}, vcc")
    for r in range(16):
        k(f"v_fmac_f32 {v(X1 + r)}, {v(GA + r)}, {v(ACC + r)}")
    k.waitcnt(vm=0, lg=0)
    k.pad(4)
    k.label("M_NODC")
    k.restore(sn)
    G.emit(["@wait Y2", "@bar"])
    k.stamp(7)
    seq = [(wd, ri) for wd in range(14) for ri in range(2)]

    def yrd(i):
        wd, ri = seq[i]
        return f"ds_read_b128 {v(YF + (i % 8) * 4, 4)}, {v(vY0 + (wd & 1))}{off(((wd >> 1) * 2 + ri) * 4096)}"
    for i in range(6):
        k(yrd(i))
    bd = [wdma(nA + n, 14 + n, "B") for n in range(nB)]
    cf = cfin(0, CG, 250)
    main = []
    for i in range(28):
        wd, ri = seq[i]
        t = f"{MF} {v(ACC + 16 * ri, 16)}, {v(YF + (i % 8) * 4, 4)}, {v(RF + wd * 4, 4)}, " + (v(ACC + 16 * ri, 16) if wd else "0")
        if i + 6 < 28:
            if i + 6 == 12:
                t += "\n@wait Y6\n@bar"
            t += "\n" + yrd(i + 6)
        if i < 6:
            t += "\n" + "\n".join(cf[:3])
            cf = cf[3:]
        elif i % 2 == 0:
            t += "\n" + bd.pop(0)
        main.append(t)
    G.emit(main)
    k(f"s_lshl_b32 s3, {s(sW)}, 12")
    k("v_add_u32 v9, s3, v2")
    for ri in range(2):
        for m in range(8):
            k(f"v_cvt_pk_bf16_f32 {v(RF + ri * 8 + m)}, {v(ACC + 16 * ri + 2 * m)}, {v(ACC + 16 * ri + 2 * m + 1)}")
            if m % 4 == 3:
                q = m // 4
                k(f"ds_write_b128 v9, {v(RF + ri * 8 + q * 4, 4)}{off(VB + (ri * 2 + q) * 1024)}")
    G.emit([bd.pop(0), bd.pop(0)])
    k.waitcnt(lg=0)
    k.barrier()
    k.stamp(8)
    order = [(ab, p, ri, q) for ab in range(2) for ri in range(2) for q in range(2) for p in range(2)]
    dst = lambda i: (YF + i * 4) if i < 8 else (RF + 16 + (i - 8) * 4)
    for i, (ab, p, ri, q) in enumerate(order):
        k(f"ds_read_b128 {v(dst(i), 4)}, v2{off(VB + ((ab * 2 + p) * 4 + ri * 2 + q) * 1024)}")
    sTM = 46
    sal = lines(f"""
    s_lshr_b32 {s(sTM)}, {s(sQ)}, 1
    s_lshl_b32 {s(sTM)}, {s(sTM)}, 2
    s_and_b32 s3, {s(sQ)}, 1
    s_add_u32 {s(sTM)}, {s(sTM)}, s3
    s_and_b32 s3, {s(sW)}, 2
    s_add_u32 s47, {s(sTM)}, s3
    s_mul_i32 s48, s47, 28672
    s_lshl_b32 s3, {s(sEB)}, 6
    s_add_u32 s48, s48, s3
    s_add_u32 s48, s48, {WS_XS}
    s_mul_i32 s47, s47, 3584
    s_lshl_b32 s3, {s(sEB)}, 3
    s_add_u32 s47, s47, s3
    s_add_u32 s47, s47, {WS_ST}
    s_and_b32 s3, {s(sW)}, 1
    s_lshl_b32 s3, s3, 31
    s_or_b32 s3, s3, 1.0
    v_lshlrev_b32 v5, 2, v1
    """)
    main = []
    for i, (ab, p, ri, q) in enumerate(order):
        T = {(0, 0): TA0, (1, 0): TB0, (0, 1): TA1, (1, 1): TB1}[(ab, ri)] + q * 4
        t = f"{MF} {v(ACC + 16 * p, 16)}, {v(dst(i), 4)}, {v(T, 4)}, " + (v(ACC + 16 * p, 16) if i >= 2 else "0")
        if i % 2 == 1 and bd:
            t += "\n" + bd.pop(0)
        elif sal:
            t += "\n" + "\n".join(sal[:3])
            sal = sal[3:]
        main.append(t)
    assert not bd and not sal
    G.emit(main)
    for q in range(2):
        for r in range(8 * q, 8 * q + 8):
            k(f"v_fmac_f32 {v(ACC + r)}, s3, {v(ACC + 16 + r)}")
        for r in range(8 * q, 8 * q + 8):
            k(f"v_fmac_f32 {v(X1 + r)}, {v(GA + r)}, {v(ACC + r)}")
        for r in range(8 * q, 8 * q + 8):
            k(f"v_mul_f32 {v(ACC + r)}, {v(X1 + r)}, {v(CB + r)}")
        for m in range(4 * q, 4 * q + 4):
            k(f"v_cvt_pk_bf16_f32 {v(RF + m)}, {v(ACC + 2 * m)}, {v(ACC + 2 * m + 1)}")
        G.emit([f"buffer_store_dwordx4 {v(RF + 4 * q, 4)}, v2, {s(SWS, 4)}, s48 offen{off(1024 * q)} sc1 #xs"])
    k(f"v_add_f32 v6, {v(X1)}, {v(X1 + 1)}")
    k(f"v_mul_f32 v7, {v(X1)}, {v(X1)}")
    k(f"v_fmac_f32 v7, {v(X1 + 1)}, {v(X1 + 1)}")
    for r in range(2, 16):
        k(f"v_add_f32 v6, v6, {v(X1 + r)}")
        k(f"v_fmac_f32 v7, {v(X1 + r)}, {v(X1 + r)}")
    G.emit(lines(f"""
    v_permlane32_swap_b32 v6, v7
    v_add_f32 v6, v6, v7
    buffer_store_dword v6, v5, {s(SWS, 4)}, s47 offen sc1 #xs
    """))
    k.stamp(9)
    for m in range(4):
        k(f"ds_write_b128 v9, {v(X1 + 4 * m, 4)}{off(YB + m * 1024)}")
    G.emit(["@wait B", "@lg0", "@bar"])
    k(f"""
    s_and_b32 s3, {s(sW)}, 1
    s_lshl_b32 s3, s3, 12
    s_lshr_b32 s40, {s(sW)}, 1
    s_lshl_b32 s40, s40, 11
    s_add_u32 s3, s3, s40
    v_add_u32 v9, s3, v2
    """)
    for th in range(2):
        for m in range(2):
            k(f"ds_read_b128 {v(X1 + 8 * th + 4 * m, 4)}, v9{off(YB + th * 8192 + m * 1024)}")
    G.emit([wtr(nA + n, 14 + n) for n in range(nB)])
    G.emit(["@wait xs"])
    k("v_mov_b32 v15, 1")
    k(f"buffer_store_dword v15, {v(vFLG)}, {s(SWS, 4)}, {s(sF2)} offen sc1")
    k.stamp(10)
    ACC, XF = 16, 80
    sHM, sWT, sWU, sHA, sHB, sPH = 50, 51, 52, 53, 54, 55
    sal = lines(f"""
    s_and_b32 {s(sPH)}, s2, {OPT['par']}
    s_lshl_b32 s47, {s(sT)}, 2
    s_add_u32 s47, s47, {s(sPH)}
    s_mul_i32 {s(sHM)}, s47, 114688
    s_mul_i32 s47, s47, 28672
    s_mul_i32 s48, {s(sW)}, 7168
    s_add_u32 s47, s47, s48
    s_add_u32 s47, s47, {WS_XS}
    s_lshl_b32 s49, {s(sT)}, 2
    s_xor_b32 s3, {s(sW)}, {s(sPH)}
    s_add_u32 s49, s49, s3
    s_mul_i32 s49, s49, 3584
    s_add_u32 s49, s49, {WS_ST}
    s_mul_i32 s3, {s(sW)}, 28672
    s_add_u32 {s(sHM)}, {s(sHM)}, s3
    s_lshl_b32 s40, {s(sFS)}, 11
    s_add_u32 {s(sHM)}, {s(sHM)}, s40
    s_add_u32 {s(sHM)}, {s(sHM)}, {WS_HM}
    s_mul_i32 {s(sHA)}, {s(sTM)}, 114688
    s_add_u32 {s(sHA)}, {s(sHA)}, s3
    s_add_u32 {s(sHA)}, {s(sHA)}, {WS_HM}
    s_and_b32 s3, {s(sQ)}, 1
    s_mul_i32 s3, s3, 14336
    s_sub_u32 {s(sHB)}, {s(sHA)}, s3
    s_add_u32 {s(sHB)}, {s(sHB)}, 14336
    s_add_u32 {s(sHA)}, {s(sHA)}, s3
    s_lshl_b32 {s(sWT)}, {s(sR)}, 2
    s_add_u32 {s(sWT)}, {s(sWT)}, {s(sW)}
    s_mul_i32 {s(sWT)}, {s(sWT)}, 57344
    s_add_u32 {s(sWT)}, {s(sWT)}, {WS_WDT}
    s_lshl_b32 s3, s3, 1
    s_sub_u32 {s(sWU)}, {s(sWT)}, s3
    s_add_u32 {s(sWU)}, {s(sWU)}, 28672
    s_add_u32 {s(sWT)}, {s(sWT)}, s3
    s_mul_i32 s56, {s(sPH)}, {-2 * 28672}
    s_mul_i32 s57, {s(sPH)}, {-2 * 114688}
    v_add_u32 v11, 57344, v2
    """)
    cv = cvec(1, ACC, XF)
    G.emit(cv[:6] + merge(cv[6:], sal, per=2))
    G.emit(cfin(1, ACC, 250))
    k.stamp(11)
    k(f"s_cmp_lg_u32 {s(sW)}, 0")
    k("s_cbranch_scc1 M_NOPOLL2")
    sn = k.snapshot()
    k(f"""
    v_min_u32 v8, 55, v1
    v_mul_u32_u24 v8, {FS}, v8
    s_mul_i32 s3, {s(sT)}, {64 * FS}
    s_add_u32 s3, s3, {FL2}
    """)
    G.poll([(8, SWS, "s3")], 1, 45, 14)
    k.label("M_NOPOLL2")
    k.restore(sn)
    k.waitcnt(lg=0)
    k.barrier()
    k.stamp(12)

    def xdma(m):
        L = []
        for i in range(7):
            t = ""
            if i % 4 == 0:
                t += "s_mov_b32 m0, s48\n"
            t += f"buffer_load_dwordx4 v2, {s(SWS, 4)}, s47 offen{off((i % 4) * 1024)} sc1 lds #X{m}"
            if i == 3:
                t += "\ns_add_u32 s47, s47, 4096\ns_add_u32 s48, s48, 4096"
            if i == 6 and m < 3:
                t += f"\ns_add_u32 s47, s47, {28672 - 4096}\ns_add_u32 s48, s48, {28672 - 4096}"
                t += "\ns_add_u32 s47, s47, s56" if m % 2 == 0 else "\ns_sub_u32 s47, s47, s56"
            L.append(t)
        return L
    G.emit(xdma(0))
    SP = 112
    for i in range(14):
        k(f"buffer_load_dword {v(SP + i)}, v5, {s(SWS, 4)}, s49 offen{off(256 * i)} sc1")
    k(f"""
    v_min_u32 v9, 27, v1
    v_mul_u32_u24 v10, {FS}, v9
    s_mov_b32 s58, {FL1}
    buffer_load_dword v12, v10, {s(SWS, 4)}, s58 offen sc1
    """)
    G.emit(xdma(1))
    EB, SG, KX, TMP, HO = 136, 152, 156, 160, 168
    st1 = [f"v_add_f32 {v(SP)}, {v(SP)}, {v(SP + i)}" for i in range(1, 14)]
    st1 += lines(f"""
    v_mul_f32 {v(SP)}, {f32(1 / 448)}, {v(SP)}
    v_mov_b32 {v(SP + 1)}, {v(SP)}
    s_lshl_b32 s3, {s(sW)}, 8
    s_add_u32 s3, s3, {SBF}
    v_permlane32_swap_b32 {v(SP)}, {v(SP + 1)}
    v_fma_f32 {v(SP + 1)}, -{v(SP)}, {v(SP)}, {v(SP + 1)}
    v_max_f32 {v(SP + 1)}, 0, {v(SP + 1)}
    v_add_f32 {v(SP + 1)}, {f32(1e-5)}, {v(SP + 1)}
    v_sqrt_f32 {v(SP + 1)}, {v(SP + 1)}
    v_sub_f32 {v(SP)}, 0, {v(SP)}
    v_lshl_add_u32 v8, v3, 3, s3
    ds_write_b64 v8, {v(SP, 2)}
    v_lshlrev_b32 v8, 3, v3
    v_add_u32 v8, {SBF}, v8
    """)
    st2 = [f"ds_read_b64 {v(SP + 2 * m, 2)}, v8{off(256 * m)}" for m in range(4)]
    for m in range(4):
        nm, sg, e = SP + 2 * m, SP + 1 + 2 * m, EB + 4 * m
        st2 += lines(f"""
        v_cvt_pk_bf16_f32 v9, {v(nm)}, {v(sg)}
        v_rcp_f32 {v(KX + m)}, {v(sg)}
        v_lshlrev_b32 v6, 16, v9
        v_and_b32 v7, 0xffff0000, v9
        v_sub_f32 v14, {v(nm)}, v6
        v_sub_f32 v15, {v(sg)}, v7
        v_cvt_pk_bf16_f32 {v(e)}, v6, v6
        v_cvt_pk_bf16_f32 {v(e + 1)}, v14, v7
        v_cvt_pk_bf16_f32 {v(e + 2)}, v7, v15
        v_mov_b32 {v(e + 3)}, 0
        v_mov_b32 {v(SG + m)}, {v(sg)}
        v_mul_f32 {v(KX + m)}, {f32(-LOG2E)}, {v(KX + m)}
        """)

    def epi(m):
        g, u = ACC + 32 * (m & 1), ACC + 32 * (m & 1) + 16
        L = []
        for r0 in range(0, 16, 4):
            rs = range(r0, r0 + 4)
            T = lambda r: v(TMP + (r & 7))
            L += [f"v_mul_f32 {T(r)}, {v(KX + m)}, {v(g + r)}" for r in rs]
            L += [f"v_exp_f32 {T(r)}, {T(r)}" for r in rs]
            L += [f"v_fma_f32 {T(r)}, {T(r)}, {v(SG + m)}, {v(SG + m)}" for r in rs]
            L += [f"v_rcp_f32 {T(r)}, {T(r)}" for r in rs]
            L += [f"v_mul_f32 {T(r)}, {T(r)}, {v(u + r)}" for r in rs]
            L += [f"v_cvt_pk_bf16_f32 {v(HO + r // 2)}, {T(r)}, {T(r + 1)}" for r in range(r0, r0 + 4, 2)]
            if r0 == 4:
                L.append(f"buffer_store_dwordx4 {v(HO, 4)}, v2, {s(SWS, 4)}, {s(sHM)} offen sc1 #H{m}")
            if r0 == 12:
                L.append(f"buffer_store_dwordx4 {v(HO + 4, 4)}, v2, {s(SWS, 4)}, {s(sHM)} offen offset:1024 sc1 #H{m}")
                if m < 3:
                    L.append(f"s_add_u32 {s(sHM)}, {s(sHM)}, 114688")
                    L.append(f"s_add_u32 {s(sHM)}, {s(sHM)}, s57" if m % 2 == 0 else f"s_sub_u32 {s(sHM)}, {s(sHM)}, s57")
        return L

    def post3(m):
        return f"@wait H{m}\nv_mov_b32 v15, {m + 1}\nbuffer_store_dword v15, {v(vFLG)}, {s(SWS, 4)}, {s(sF3)} offen sc1"

    def xrd(n):
        o = n * 1024
        return f"ds_read_b128 {v(XF + (n % 8) * 4, 4)}, {v(2 if o < 57344 else 11)}{off(o if o < 57344 else o - 57344)}"

    def chk(name, vflag, vaddr, soff, val):
        G.nlab += 1
        L = f"CHK{G.nlab}"
        k(f"v_cmp_gt_u32 vcc, {val}, {v(vflag)}")
        k(f"s_cbranch_vccz {L}")
        snn = k.snapshot()
        G.poll([(vaddr, SWS, soff)], val, 45, vflag)
        k.label(L)
        k.restore(snn)
    G.chkW = lambda: chk("W", 12, 10, "s58", 3)
    fl3 = lines(f"""
    v_min_u32 v6, 6, v1
    v_mul_u32_u24 v6, {FS}, v6
    s_lshr_b32 s58, {s(sQ)}, 1
    s_lshl_b32 s58, s58, 6
    s_lshl_b32 s3, {s(sW)}, 4
    s_add_u32 s58, s58, s3
    s_mul_i32 s58, s58, {FS}
    s_add_u32 s58, s58, {FL3}
    s_and_b32 s3, {s(sQ)}, 1
    s_mul_i32 s3, s3, {7 * FS}
    s_sub_u32 s59, s58, s3
    s_add_u32 s59, s59, {7 * FS}
    s_add_u32 s58, s58, s3
    """)
    need = (lambda n: n) if OPT["par"] else (lambda n: 2 * ((n + 1) // 2))
    pol = lambda n: f"buffer_load_dword v12, v6, {s(SWS, 4)}, {'s58' if n % 2 else 's59'} offen sc1"
    G.chk3 = lambda n: chk("H", 12, 6, "s58" if int(n) % 2 else "s59", need(int(n)))
    E = [a(224 + 4 * i, 4) for i in range(8)] + [v(208 + 4 * i, 4) for i in range(12)] + [v(176, 4), v(180, 4), v(128, 4), v(132, 4)] + [v(112 + 4 * i, 4) for i in range(4)]
    assert len(E) == 28
    freed = []
    for ks in range(28):
        freed += [a(4 * ks, 4), a(112 + 4 * ks, 4)]
    HA = [freed[2 * i] for i in range(14)]
    HB = [freed[2 * i] for i in range(14, 28)]
    W2 = [freed[2 * i + 1] for i in range(28)]
    home = E + W2

    def gload(reg, sb, i, last):
        t = f"buffer_load_dwordx4 {reg}, v2, {s(SWS, 4)}, {s(sb)} offen{off((i % 4) * 1024)} sc1"
        if i % 4 == 3 and not last:
            t += f"\ns_add_u32 {s(sb)}, {s(sb)}, 4096"
        return t
    sLW = 49
    ldsoff = [114688 + i * 1024 for i in range(11)] + [3072, 0, 1024, 2048, 4096, 5120, 6144] + [28672 + i * 1024 for i in range(7)]
    assert all(o >= (i % 4) * 1024 for i, o in enumerate(ldsoff))

    def wlds(i):
        base = "s43" if i < 11 else "s44"
        return (f"s_add_u32 m0, {base}, {ldsoff[i] - (i % 4) * 1024}\n"
                f"buffer_load_dwordx4 v2, {s(SWS, 4)}, {s(sWU)} offen{off((i % 4) * 1024)} sc1 lds #WL"
                + (f"\ns_add_u32 {s(sWU)}, {s(sWU)}, 4096" if i % 4 == 3 else ""))
    wl_setup = lines(f"""
    s_mul_i32 s43, {s(sW)}, 11264
    s_mul_i32 s44, {s(sW)}, 7168
    """)
    wl_rd_setup = lines(f"""
    s_add_u32 s3, s43, 114688
    v_add_u32 v9, s3, v2
    v_add_u32 v10, s44, v2
    """)

    def wlrd(i):
        if i < 11:
            return f"ds_read_b128 {W2[i]}, v9{off(i * 1024)}"
        return f"ds_read_b128 {W2[i]}, v10{off(ldsoff[i])}"
    PF = 5
    for m in range(4):
        if m == 0:
            G.emit(["@wait X0", "@bar"])
            k.stamp(13)
            for n in range(PF):
                k(xrd(n))
        g, u = ACC + 32 * (m & 1), ACC + 32 * (m & 1) + 16
        side = {ks: [] for ks in range(28)}
        if m == 0:
            for i, t in enumerate(xdma(2) + xdma(3)):
                side[i].append(t)
            side[14] += wl_setup + ["@call chkW"]
            for i in range(11):
                side[15 + i].append(wlds(i))
        if m == 1:
            for i in range(28):
                side[i].append(gload(E[i], sWT, i, i == 27))
            side[27].append(post3(0))
        if m == 2:
            for i in range(11, 18):
                side[i - 11].append(wlds(i))
            side[8].append("@bar")
            for i in range(18, 25):
                side[i - 9].append(wlds(i))
            side[17] += fl3
            side[20].append(pol(1))
            side[24].append(post3(1))
            side[26] += wl_rd_setup
            side[27].append("@call chk3 1")
        if m == 3:
            for i in range(14):
                side[i].append(gload(HA[i], sHA, i, False))
            side[8].append(pol(2))
            side[14].append("@call chk3 2")
            for i in range(14):
                side[14 + i].append(gload(HB[i], sHB, i, False))
            side[0].append("@wait WL")
            for i in range(25):
                side[i + 1].append(wlrd(i))
            side[24].append(post3(2))
        main = []
        for ks in range(28):
            n = m * 28 + ks
            main.append(f"{MF} {v(g, 16)}, {a(ks * 4, 4)}, {v(XF + (n % 8) * 4, 4)}, " + (v(g, 16) if ks else "0"))
            nx = n + PF
            t = f"{MF} {v(u, 16)}, {a(112 + ks * 4, 4)}, {v(XF + (n % 8) * 4, 4)}, " + (v(u, 16) if ks else "0")
            if nx < 112:
                if nx == 56:
                    t += f"\n@wait X3\n@bar"
                t += "\n" + xrd(nx)
            for it in side[ks]:
                t += "\n" + it
            main.append(t)
        main.append(f"{MF} {v(g, 16)}, {v(EA, 4)}, {v(EB + 4 * m, 4)}, {v(g, 16)}")
        main.append(f"{MF} {v(u, 16)}, {v(EA + 4, 4)}, {v(EB + 4 * m, 4)}, {v(u, 16)}")
        if m == 0:
            fill = st1 + ["@wait X1\n@lg0\n@bar"] + st2
            mg = merge2(main, fill, start=6)
            assert mg.index(fill[-1]) < mg.index(main[-2]) and mg.index("@wait X1\n@lg0\n@bar") < mg.index(main[2 * (28 - PF) + 1])
        else:
            fill = epi(m - 1)
            mg = merge2(main, fill, start=3)
            assert mg.index(fill[-1]) < mg.index(main[44])
        G.emit(mg)
    k.stamp(14)
    GB = 80
    RED = 57344
    k(f"s_add_u32 {s(sHA)}, {s(sHA)}, {2 * 114688 - 12288}")
    k(f"s_add_u32 {s(sHB)}, {s(sHB)}, {2 * 114688 - 12288}")

    def group(n):
        th, hf = n // 2, n % 2
        H = HB if hf else HA
        L = []
        for i in range(14):
            for sg in range(2):
                t = ACC + 16 * (th * 2 + sg)
                L.append(f"{MF} {v(t, 16)}, {home[hf * 28 + i * 2 + sg]}, {H[i]}, " + (v(t, 16) if (i or hf) else "0"))
        return L

    def redw(th):
        return [f"ds_write_b128 v9, {v(ACC + 16 * (th * 2 + sg) + 4 * m, 4)}{off(th * 32768 + (sg * 2 + (m >> 1)) * 8192 + (m & 1) * 1024)}"
                for sg in range(2) for m in range(4)]

    def fin(th):
        R = 96
        L = [f"ds_read_b128 {v(R + 8 * w + 4 * m, 4)}, v10{off(th * 32768 + w * 2048 + m * 1024)}" for w in range(4) for m in range(2)]
        L += [f"v_add_f32 {v(R + r)}, {v(R + r)}, {v(R + 8 + r)}" for r in range(8)]
        L += [f"v_add_f32 {v(R + 16 + r)}, {v(R + 16 + r)}, {v(R + 24 + r)}" for r in range(8)]
        L += [f"v_add_f32 {v(R + r)}, {v(R + r)}, {v(R + 16 + r)}" for r in range(8)]
        L += [f"v_fmac_f32 {v(X1 + 8 * th + r)}, {v(GB + r)}, {v(R + r)}" for r in range(8)]
        L += [f"v_cvt_pk_bf16_f32 {v(88 + 4 * th + m)}, {v(X1 + 8 * th + 2 * m)}, {v(X1 + 8 * th + 2 * m + 1)}" for m in range(4)]
        L += [f"v_permlane32_swap_b32 {v(88 + 4 * th)}, {v(90 + 4 * th)}", f"v_permlane32_swap_b32 {v(89 + 4 * th)}, {v(91 + 4 * th)}"]
        L += [f"buffer_store_dwordx4 {v(88 + 4 * th, 4)}, v8, {s(SC, 4)}, {'s48' if th else 's47'} offen" + ["", " sc1", " nt", " sc0 sc1"][OPT["outmod"]]]
        return L
    g1 = group(0)
    pre = [gload(W2[25 + i], sWU, 25 + i, True) for i in range(3)]
    G.emit(merge2(g1, pre + epi(3), start=0, budget=6))
    g2 = group(1)
    setup = lines(f"""
    s_lshl_b32 s3, {s(sW)}, 11
    s_add_u32 s3, s3, {RED}
    v_add_u32 v9, s3, v2
    s_and_b32 s3, {s(sW)}, 1
    s_lshl_b32 s3, s3, 14
    s_lshr_b32 s40, {s(sW)}, 1
    s_lshl_b32 s43, s40, 13
    s_add_u32 s3, s3, s43
    s_add_u32 s3, s3, {RED}
    v_add_u32 v10, s3, v2
    s_lshl_b32 s40, s40, 4
    s_add_u32 s40, s40, {s(sEB)}
    s_lshl_b32 s3, s40, 2
    s_add_u32 s3, s3, {WS_MODF + 3 * 1792}
    v_lshlrev_b32 v8, 4, v4
    buffer_load_dwordx4 {v(GB, 4)}, v8, {s(SWS, 4)}, s3 offen sc1
    buffer_load_dwordx4 {v(GB + 4, 4)}, v8, {s(SWS, 4)}, s3 offen offset:32 sc1
    v_mul_u32_u24 v7, 57344, v3
    v_add_u32 v8, v8, v7
    s_lshl_b32 s40, s40, 1
    s_mul_i32 s47, {s(sQ)}, 896
    s_add_u32 s47, s47, s40
    s_mul_i32 s48, {s(sTB1)}, 896
    s_add_u32 s48, s48, s40
    """)
    G.emit([pol(3)])
    side = [""] * 28
    P3, C3 = OPT.get("p3", 8), OPT.get("c3", 10)
    for i in range(28):
        t = g2[i]
        if i == P3:
            t += "\n" + post3(3)
        if i == C3:
            t += "\n@call chk3 3"
        if i >= C3 and i - C3 < 14:
            t += "\n" + gload(HA[i - C3], sHA, i - C3, False)
        side[i] = t
    G.emit(merge2(side, setup, start=0))
    k.barrier()
    g3 = group(2)
    side = []
    P4_, C4 = OPT.get("p4", 12), OPT.get("c4", 27)
    for i in range(28):
        t = g3[i]
        if i == P4_:
            t += "\n" + pol(4)
        if i == C4:
            t += "\n@call chk3 4"
        if i >= C4:
            t += "\n" + gload(HB[i - C4], sHB, i - C4, False)
        side.append(t)
    G.emit(merge2(side, redw(0), start=3, budget=2))
    G.emit([gload(HB[i], sHB, i, False) for i in range(28 - C4, 14)])
    G.emit(["@lg0", "@bar"])
    G.emit(fin(0))
    G.emit(group(3))
    G.emit(redw(1))
    G.emit(["@lg0", "@bar"])
    G.emit(fin(1))
    k.stamp_dump(SWS, WS_DIAG)
    k("s_endpgm")

    k.label("K_HELP")
    k.restore(snap0)
    SWM, SCC, SWD = SA, SB_, SC
    srd_load(k, SWM, "wm")
    srd_load(k, SCC, "c")
    srd_load(k, SWD, "wd")
    for b, n in ((SWS, "ws"), (SD, "dbg"), (SWM, "wm"), (SCC, "c"), (SWD, "wd")):
        srd_fin(k, b, n)
    k(f"""
    v_lshrrev_b32 v5, 6, v0
    v_and_b32 v1, 63, v0
    v_readfirstlane_b32 {s(sW)}, v5
    v_lshlrev_b32 v2, 2, v0
    v_and_b32 v5, 3, v1
    """)

    def codepf(reg):
        if OPT["codepf"]:
            G.nlab += 1
            k(f"s_getpc_b64 s[52:53]")
            k.label(f"PC{G.nlab}")
            k(f"s_sub_u32 s52, s52, PC{G.nlab}-{NAME}_kernel")
            k("s_subb_u32 s53, s53, 0")
            k(f"v_lshlrev_b32 {v(reg)}, 7, v0")
            k(f"v_min_u32 {v(reg)}, K_LAST-{NAME}_kernel, {v(reg)}")
            k(f"v_mov_b32 {v(reg + 1)}, s53")
            k(f"v_add_co_u32 {v(reg)}, vcc, s52, {v(reg)}")
            k(f"v_addc_co_u32 {v(reg + 1)}, vcc, 0, {v(reg + 1)}, vcc")
            k(f"global_load_dword {v(reg)}, {v(reg, 2)}, off")
    k("s_cmp_lt_u32 s2, 28")
    k("s_cbranch_scc1 H_WORK")
    sn = k.snapshot()
    k("s_cmp_lg_u32 s2, 28")
    k("s_cbranch_scc1 K_END")
    k(f"""
    v_mul_u32_u24 v2, {FS}, v0
    v_mov_b32 v3, 0
    s_mov_b32 s3, {FL1}
    buffer_store_dword v3, v2, {s(SWS, 4)}, s3 offen sc1
    """)
    k.waitcnt(vm=0)
    k.barrier()
    k(f"""
    v_cmp_eq_u32 vcc, 0, v0
    v_mov_b32 v4, 0x7ffffffc
    v_mov_b32 v3, 1
    v_cndmask_b32 v2, v4, 0, vcc
    buffer_store_dword v3, v2, {s(SD, 4)}, 0 offen sc1
    s_endpgm
    """)
    k.label("H_WORK")
    k.restore(sn)
    SBU, RED, BC, PR = 0, 1024, 2048, 4096
    SF, WF, ACC, TG = 16, 128, 240, 64
    k(f"buffer_load_dword v3, v2, {s(SCC, 4)}, 0 offen")

    def silu():
        k(f"""
        v_cmp_eq_u32 vcc, 0, v0
        v_mov_b32 v14, 0x7ffffffc
        v_mov_b32 v15, 0
        v_cndmask_b32 v62, v14, 0, vcc
        s_mul_i32 s38, s2, {FS}
        s_add_u32 s38, s38, {FL1}
        v_and_b32 v6, 0xf9, v0
        v_bfe_u32 v7, v0, 1, 1
        v_lshl_add_u32 v6, v7, 2, v6
        v_bfe_u32 v7, v0, 2, 1
        v_lshl_add_u32 v6, v7, 1, v6
        v_lshlrev_b32 v6, 2, v6
        v_lshlrev_b32 v7, 16, v3
        v_and_b32 v8, 0xffff0000, v3
        v_mul_f32 v9, {f32(-LOG2E)}, v7
        v_mul_f32 v10, {f32(-LOG2E)}, v8
        v_exp_f32 v9, v9
        v_exp_f32 v10, v10
        v_add_f32 v9, 1.0, v9
        v_add_f32 v10, 1.0, v10
        v_rcp_f32 v9, v9
        v_rcp_f32 v10, v10
        v_mul_f32 v7, v7, v9
        v_mul_f32 v8, v8, v10
        v_cvt_pk_bf16_f32 v7, v7, v8
        ds_write_b32 v6, v7{off(SBU)}
        """)

    def post(val, check_ready):
        if check_ready:
            G.nlab += 1
            L = f"RDY{G.nlab}"
            k("v_cmp_eq_u32 vcc, 0, v63")
            k(f"s_cbranch_vccz {L}")
            snn = k.snapshot()
            G.poll([(15, SD, "0")], 1, 45, 63)
            k.label(L)
            k.restore(snn)
        k(f"v_mov_b32 v14, {val}")
        k(f"buffer_store_dword v14, v62, {s(SWS, 4)}, s38 offen sc1")

    def wd_dma(WDL):
        k(f"""
        v_lshlrev_b32 v61, 4, v1
        s_mul_i32 s37, {s(sW)}, 14336
        s_mul_i32 s34, s2, 57344
        s_add_u32 s34, s34, s37
        s_add_u32 s37, s37, {WDL}
        s_mov_b32 s36, s37
        """)
        for i in range(14):
            if i % 4 == 0:
                k("s_mov_b32 m0, s36")
            G.emit([f"buffer_load_dwordx4 v61, {s(SWD, 4)}, s34 offen{off((i % 4) * 1024)} lds #HW"])
            if i % 4 == 3:
                k("s_add_u32 s34, s34, 4096")
                k("s_add_u32 s36, s36, 4096")
    k("s_cmp_ge_u32 s2, 14")
    k("s_cbranch_scc1 H_SEC")
    snS = k.snapshot()
    k(f"""
    v_lshrrev_b32 v4, 2, v1
    s_mul_i32 s3, {s(sW)}, 112
    v_add_u32 v4, s3, v4
    v_mul_u32_u24 v4, 5376, v4
    v_lshl_add_u32 v4, v5, 4, v4
    s_lshl_b32 s34, s2, 6
    s_add_u32 s34, s34, 896
    s_mul_i32 s35, {s(sW)}, 7168
    """)

    def win_dma(base, tag):
        for i in range(7):
            G.emit([f"s_add_u32 m0, s35, {base + i * 1024}",
                    f"buffer_load_dwordx4 v4, {s(SWM, 4)}, s34 offen lds #{tag}",
                    f"s_add_u32 s34, s34, {16 * 5376}"])
    win_dma(PR, "HP")
    k(f"""
    v_lshrrev_b32 v8, 5, v1
    v_lshlrev_b32 v12, 8, v8
    v_bfe_u32 v10, v1, 2, 2
    v_lshl_add_u32 v12, v10, 6, v12
    v_bfe_u32 v10, v1, 4, 1
    v_lshl_add_u32 v12, v10, 5, v12
    v_lshl_add_u32 v12, v5, 3, v12
    v_add_u32 v13, s35, v12
    """)
    silu()
    k(f"""
    v_lshrrev_b32 v8, 5, v1
    v_lshlrev_b32 v8, 2, v8
    s_lshl_b32 s3, s2, 5
    s_and_b32 s36, {s(sW)}, 1
    s_add_u32 s3, s3, s36
    v_add_u32 v8, s3, v8
    v_cvt_f32_u32 v8, v8
    v_and_b32 v9, 31, v1
    v_cvt_f32_u32 v9, v9
    s_lshr_b32 s36, {s(sW)}, 1
    s_mul_i32 s36, s36, 0x3e800000
    v_mov_b32 v14, s36
    """)
    trig = []
    for n in range(8):
        dn = 2 * (n & 1) + 8 * (n >> 1)
        trig += lines(f"""
        v_add_f32 v10, {f32(float(dn))}, v8
        v_mul_f32 v11, v10, v9
        v_fmamk_f32 v11, v11, {f32(1 / 448)}, v14
        v_mul_f32 v10, {f32(1 / 14)}, v10
        v_fract_f32 v10, v10
        """)
        for j in range(7):
            r = TG + j * 8 + n
            if j == 0:
                trig.append(f"v_cos_f32 {v(r)}, v11")
            else:
                trig += [f"v_fmamk_f32 {v(r)}, v10, {f32(float(j))}, v11", f"v_cos_f32 {v(r)}, {v(r)}"]
    half = len(trig) * 5 // 8
    G.emit(trig[:half])
    k.stamp(1)
    k.waitcnt(lg=0)
    k.barrier()
    k(f"""
    v_lshrrev_b32 v6, 5, v1
    v_lshlrev_b32 v6, 4, v6
    s_mul_i32 s3, {s(sW)}, 224
    v_add_u32 v7, s3, v6
    """)
    for i in range(7):
        k(f"ds_read_b128 {v(SF + i * 4, 4)}, v7{off(SBU + i * 32)}")
    k(f"buffer_load_dword v63, v15, {s(SD, 4)}, 0 offen sc1")

    def win_gemv(base, tag, add1, fill):
        G.emit([f"@wait {tag}"])
        for i in range(7):
            k(f"ds_read_b64_tr_b16 {v(WF + i * 4, 2)}, v13{off(base + i * 1024)}")
            k(f"ds_read_b64_tr_b16 {v(WF + i * 4 + 2, 2)}, v13{off(base + i * 1024 + 512)}")
        mm = [f"{MF} {v(ACC, 16)}, {v(SF + i * 4, 4)}, {v(WF + i * 4, 4)}, " + (v(ACC, 16) if i else "0") for i in range(7)]
        G.emit(merge2(mm, fill, start=0))
        k(f"""
        v_and_b32 v56, 31, v1
        v_lshlrev_b32 v56, 2, v56
        s_lshl_b32 s3, {s(sW)}, 7
        v_add_u32 v57, s3, v56
        ds_write_b32 v57, {v(ACC)} offset:{RED}
        """)
        k.waitcnt(lg=0)
        k.barrier()
        for i in range(4):
            k(f"ds_read_b32 {v(44 + i)}, v56 offset:{RED + i * 128}")
        k(f"""
        s_and_b32 s36, {s(sW)}, 1
        s_lshl_b32 s36, s36, 2
        s_add_u32 s3, s3, s36
        s_add_u32 s3, s3, {BC}
        v_add_u32 v58, s3, v6
        v_add_f32 v44, v44, v45
        v_add_f32 v46, v46, v47
        v_add_f32 v44, v44, v46
        """)
        round_bf16(k, 44, 44)
        if add1:
            k("v_add_f32 v44, 1.0, v44")
            round_bf16(k, 44, 44)
        k(f"ds_write_b32 v57, v44 offset:{BC}")
        k.waitcnt(lg=0)
        for m in range(4):
            k(f"ds_read2_b32 {v(48 + 2 * m, 2)}, v58 offset0:{8 * m} offset1:{8 * m + 2}")
    win_gemv(PR, "HP", True, trig[half:])
    k.stamp(2)
    k(f"""
    v_lshlrev_b32 v9, 4, v1
    s_mul_i32 s3, {s(sW)}, 14
    s_add_u32 s3, s3, s2
    s_lshl_b32 s3, s3, 10
    s_add_u32 s3, s3, {WS_RP}
    """)
    for j in range(7):
        o = 160 + j * 8
        for n in range(8):
            k(f"v_mul_f32 {v(o + n)}, {v(TG + j * 8 + n)}, {v(48 + n)}")
        for m in range(4):
            k(f"v_cvt_pk_bf16_f32 {v(o + m)}, {v(o + 2 * m)}, {v(o + 2 * m + 1)}")
        G.emit([f"buffer_store_dwordx4 {v(o, 4)}, v9, {s(SWS, 4)}, s3 offen sc1 #RP"])
        k(f"s_add_u32 s3, s3, {56 * 1024}")
    k("s_lshl_b32 s34, s2, 6")
    win_dma(PR + 28672, "HQ")
    G.emit(["@wait RP", "@bar"])
    post(1, True)
    k.stamp(3)
    codepf(58)
    wd_dma(65536)
    win_gemv(PR + 28672, "HQ", False, [])
    for j in range(7):
        k(f"v_mul_f32 {v(160 + j)}, {v(TG + j * 8)}, v48")
        for n in range(1, 8):
            k(f"v_fmac_f32 {v(160 + j)}, {v(TG + j * 8 + n)}, {v(48 + n)}")
    for j in range(7):
        k(f"v_mov_b32 {v(168 + j)}, {v(160 + j)}")
    for j in range(7):
        k(f"v_permlane32_swap_b32 {v(160 + j)}, {v(168 + j)}")
    k(f"""
    v_cmp_gt_u32 vcc, 128, v0
    v_mov_b32 v14, 0x7ffffffc
    v_cndmask_b32 v9, v14, v56, vcc
    s_and_b32 s3, {s(sW)}, 1
    s_mul_i32 s3, s3, 14
    s_add_u32 s3, s3, s2
    s_mul_i32 s3, s3, 896
    s_add_u32 s3, s3, {WS_SAH}
    """)
    for j in range(7):
        k(f"v_add_f32 {v(160 + j)}, {v(160 + j)}, {v(168 + j)}")
        k(f"buffer_store_dword {v(160 + j)}, v9, {s(SWS, 4)}, s3 offen{off(128 * j)} sc1")
    k.waitcnt(vm=0)
    k.barrier()
    post(2, False)
    k("s_branch H_WD")
    k.label("H_SEC")
    k.restore(snS)
    k(f"""
    v_lshrrev_b32 v6, 4, v1
    v_lshlrev_b32 v7, 2, v6
    v_and_b32 v4, 15, v1
    v_xor_b32 v4, v4, v7
    v_lshlrev_b32 v4, 4, v4
    v_lshl_add_u32 v6, {s(sW)}, 2, v6
    v_mul_u32_u24 v6, 5376, v6
    v_add_u32 v4, v4, v6
    s_lshl_b32 s34, s2, 8
    s_sub_u32 s34, s34, {14 * 256 - 1792}
    s_lshl_b32 s35, {s(sW)}, 10
    """)
    for i in range(28):
        G.emit([f"s_add_u32 m0, s35, {PR + i * 4096}",
                f"buffer_load_dwordx4 v4, {s(SWM, 4)}, s34 offen lds #HS",
                f"s_add_u32 s34, s34, {16 * 5376}"])
    codepf(58)
    silu()
    k(f"""
    buffer_load_dword v63, v15, {s(SD, 4)}, 0 offen sc1
    v_bfe_u32 v6, v1, 2, 2
    v_xor_b32 v7, {s(sW)}, v6
    v_lshlrev_b32 v12, 6, v7
    v_lshl_add_u32 v12, v6, 8, v12
    v_lshrrev_b32 v8, 5, v1
    v_lshl_add_u32 v12, v8, 10, v12
    v_bfe_u32 v6, v1, 4, 1
    v_lshl_add_u32 v12, v6, 5, v12
    v_lshl_add_u32 v12, v5, 3, v12
    v_add_u32 v13, {PR + 57344}, v12
    v_add_u32 v12, {PR}, v12
    v_lshlrev_b32 v8, 4, v8
    """)
    k.stamp(1)
    G.emit(["@wait HS", "@lg0", "@bar"])
    k.stamp(2)

    def srd_(i):
        return (f"ds_read_b128 {v(16 + (i % 8) * 4, 4)}, v8{off(SBU + i * 32)}\n"
                f"ds_read_b64_tr_b16 {v(64 + (i % 8) * 4, 2)}, {v(12 + i // 14)}{off((i % 14) * 4096)}\n"
                f"ds_read_b64_tr_b16 {v(66 + (i % 8) * 4, 2)}, {v(12 + i // 14)}{off((i % 14) * 4096 + 2048)}")
    G.emit([srd_(i) for i in range(4)])
    for i in range(28):
        k(f"{MF} {v(ACC, 16)}, {v(16 + (i % 8) * 4, 4)}, {v(64 + (i % 8) * 4, 4)}, " + (v(ACC, 16) if i else "0"))
        if i + 4 < 28:
            G.emit([srd_(i + 4)])
    k(f"""
    s_sub_u32 s36, s2, 14
    s_lshl_b32 s36, s36, 2
    s_add_u32 s36, s36, {s(sW)}
    s_sub_u32 s3, s36, 28
    s_cmp_lt_u32 s3, 14
    s_cselect_b32 s39, 1.0, 0
    v_and_b32 v9, 31, v1
    v_and_b32 v6, 0x13, v1
    v_bfe_u32 v7, v1, 2, 1
    v_lshl_add_u32 v6, v7, 3, v6
    v_bfe_u32 v7, v1, 3, 1
    v_lshl_add_u32 v6, v7, 2, v6
    v_lshlrev_b32 v6, 1, v6
    v_lshlrev_b32 v9, 2, v9
    """)
    round_bf16(k, 44, ACC)
    k("v_add_f32 v44, s39, v44")
    round_bf16(k, 44, 44)
    k(f"""
    s_lshl_b32 s3, s36, 7
    s_add_u32 s3, s3, {WS_MODF}
    buffer_store_dword v44, v9, {s(SWS, 4)}, s3 offen sc1
    s_lshl_b32 s3, s36, 6
    s_add_u32 s3, s3, {WS_MODB}
    buffer_store_short_d16_hi v44, v6, {s(SWS, 4)}, s3 offen sc1
    """)
    k.waitcnt(vm=0)
    k.barrier()
    post(1, True)
    k.stamp(3)
    wd_dma(65536)
    k.label("H_WD")
    k.stamp(4)
    k(f"""
    v_lshrrev_b32 v13, 5, v1
    v_lshlrev_b32 v13, 2, v13
    v_bfe_u32 v10, v1, 2, 2
    v_add_u32 v13, v13, v10
    v_mul_u32_u24 v13, 896, v13
    v_bfe_u32 v10, v1, 4, 1
    v_lshl_add_u32 v13, v10, 5, v13
    v_lshl_add_u32 v13, v5, 3, v13
    v_add_u32 v13, s37, v13
    s_and_b32 s3, s2, 1
    s_lshl_b32 s3, s3, 1
    s_lshr_b32 s36, {s(sW)}, 1
    s_add_u32 s3, s3, s36
    s_mul_i32 s34, s3, 57344
    s_lshr_b32 s3, s2, 1
    s_lshl_b32 s3, s3, 12
    s_add_u32 s34, s34, s3
    s_and_b32 s3, {s(sW)}, 1
    s_lshl_b32 s3, s3, 11
    s_add_u32 s34, s34, s3
    s_add_u32 s34, s34, {WS_WDT}
    """)
    k.waitcnt(vm=0)
    for cb in range(14):
        k(f"ds_read_b64_tr_b16 {v(WF + cb * 4, 2)}, v13{off(cb * 64)}")
        k(f"ds_read_b64_tr_b16 {v(WF + cb * 4 + 2, 2)}, v13{off(cb * 64 + 8 * 896)}")
    for j in range(7):
        for sg in range(2):
            k(f"buffer_store_dwordx4 {v(WF + (j + 7 * sg) * 4, 4)}, v61, {s(SWS, 4)}, s34 offen{off(1024 * sg)} sc1")
        k(f"s_add_u32 s34, s34, {4 * 57344}")
    k.waitcnt(vm=0)
    k.barrier()
    post(3, False)
    k.nst = 5
    k.stamp_dump(SWS, WS_DIAG)
    k.label("K_END")
    k.label("K_LAST")
    k("s_endpgm")
    return k, 163840


def build(k, lds, extra=()):
    ref = open(f"cdna_kernels/{NAME}.s.ref").read().split("\n")
    head = [l for l in ref if l.startswith(";") and "@launch" not in l and "Override launch" not in l and "grid=ceil" not in l]
    out = list(head)
    kernels = [(NAME + "_kernel", (k, lds), 256)] + list(extra)
    if extra:
        for name, (kk, l), grid in kernels:
            out.append(f"; @launch kernel={name} grid=({grid},1,1) block=(256,1,1) lds={l}")
    else:
        out.append(f"; @launch grid=(256,1,1) block=(256,1,1) lds={lds}")
    out.append('.amdgcn_target "amdgcn-amd-amdhsa--gfx950"')
    out.append(".text")
    for name, (kk, l), grid in kernels:
        out += [f".globl {name}", ".p2align 8", f".type {name},@function", f"{name}:", kk.text()]
    out.append('.section .rodata,"a"')
    for name, (kk, l), grid in kernels:
        acc = (kk.maxv + 4) // 4 * 4
        nfv = acc + kk.maxa + 1 if kk.maxa >= 0 else kk.maxv + 1
        out += [".p2align 6", f".amdhsa_kernel {name}",
                f"  .amdhsa_next_free_vgpr {nfv}", f"  .amdhsa_next_free_sgpr {max(kk.maxs + 1, 16)}",
                f"  .amdhsa_accum_offset {acc}", "  .amdhsa_group_segment_fixed_size 0",
                "  .amdhsa_kernarg_size 112", "  .amdhsa_user_sgpr_count 2",
                "  .amdhsa_user_sgpr_kernarg_segment_ptr 1", "  .amdhsa_system_sgpr_workgroup_id_x 1",
                "  .amdhsa_float_denorm_mode_32 3",
                ".end_amdhsa_kernel"]
    return "\n".join(out) + "\n"


if __name__ == "__main__":
    args = sys.argv[2:]
    if "stamps" in args:
        Kern.STAMPS = True
    for x in args:
        if "=" in x:
            n, val = x.split("=")
            OPT[n] = int(val)
    k, lds = gen()
    print("lines", len(k.out), "nops", k.nops, "maxv", k.maxv, "maxa", k.maxa, "maxs", k.maxs, file=sys.stderr)
    open(sys.argv[1], "w").write(build(k, lds))
```

```python
import sys
from gen1 import *
def mk(name, arg, size, stride, nwg, n, mapping, seg=256):
    k=Kern()
    k(f"s_cmp_ge_u32 s2, {nwg}"); k(f"s_cbranch_scc1 E_{name}")
    k("s_load_dwordx2 s[8:9], s[0:1], 104"); k(f"s_mov_b32 s10, {WS_SIZE}"); k("s_mov_b32 s11, 0x00020000")
    k(f"s_load_dwordx2 s[12:13], s[0:1], {arg}"); k(f"s_mov_b32 s14, {size}"); k("s_mov_b32 s15, 0x00020000")
    k("v_and_b32 v1, 63, v0")
    wave_id(k,22,3)
    role(k,20,21)
    k.waitcnt(lg=0)
    k("s_memrealtime s[60:61]")
    if mapping=="id": k("s_mov_b32 s23, s2")
    if mapping=="x7": k("s_and_b32 s3, s2, 1"); k("s_mul_i32 s3, s3, 7"); k("s_add_u32 s23, s21, s3")
    lpr=seg//16; rows=64//lpr
    if stride==0:
        k("v_lshlrev_b32 v2, 4, v0"); k(f"s_mul_i32 s23, s23, {n*4096}"); step=4096
    else:
        k(f"v_lshrrev_b32 v2, {lpr.bit_length()-1}, v0"); k(f"v_mul_u32_u24 v2, {stride}, v2"); k(f"v_and_b32 v3, {lpr-1}, v1"); k("v_lshl_add_u32 v2, v3, 4, v2")
        k(f"s_mul_i32 s23, s23, {seg}"); step=4*rows*stride
    k("s_lshl_b32 s25, s22, 10")
    for i in range(n):
        k(f"s_add_u32 m0, s25, {(i%32)*4096}")
        k("s_nop 0")
        k("buffer_load_dwordx4 v2, s[12:15], s23 offen lds")
        k(f"s_add_u32 s23, s23, {step}")
    k("s_memrealtime s[62:63]")
    k.waitcnt(vm=0)
    k("s_memrealtime s[64:65]")
    k.waitcnt(vm=0,lg=0)
    k("v_lshrrev_b32 v2, 6, v0"); k("v_lshlrev_b32 v2, 6, v2"); k("s_lshl_b32 s3, s2, 8")
    for i in range(3):
        k(f"v_mov_b32 v3, s{60+2*i}"); k(f"buffer_store_dword v3, v2, s[8:11], s3 offen offset:{4*i}")
    k.label(f"E_{name}"); k("s_endpgm")
    return k,131072
W=SZ['wg']; M=SZ['wm']
VAR=[("lin14",80,M,0,14,28,"id"),("wm14",80,M,5376,14,28,"id"),("wm21",80,M,5376,21,28,"id"),("wg14",48,W,3584,14,28,"id"),
     ("lin224",48,W,0,224,28,"x7"),("wg224",48,W,3584,224,28,"x7"),("wm128s42",80,M,5376,42,14,"id",128),("wm64s84",80,M,5376,84,7,"id",64)]
if __name__=="__main__":
    for vv in VAR:
        open(f"mbp_{vv[0]}.s","w").write(build([(vv[0]+"_kernel",mk(*vv),224)]))
```

```python
import gen3, mbp, gen1
from leak import leak
from dsl import *
k,lds=gen3.gen()
NAME=gen3.NAME
def mkp(vv):
    kk,l=mbp.mk(*vv)
    kk.out=[x.replace("s_lshl_b32 s3, s2, 8","s_lshl_b32 s3, s2, 8\n    s_add_u32 s3, s3, 0x1400000\n    s_sub_u32 s64, s64, s60\n    s_mov_b32 s60, 0") for x in kk.out]
    return kk,l
W=gen1.SZ['wg']; M=gen1.SZ['wm']
P=[("wg224",48,W,3584,224,28,"x7"),("wg224",48,W,3584,224,28,"x7"),("wm14",80,M,5376,14,28,"id"),("lin14",8,8388608,0,14,28,"id"),("lin14",0,gen1.SZ['x'],0,14,28,"id"),("lin14",64,W,0,14,28,"id")]
for n,vv in enumerate(P):
    ks=[("pr_kernel",mkp(vv),224),(NAME+"_kernel",(k,lds),256),("lk_kernel",leak(gen3.WS_SIZE,0x1400000,"min",0x1400008,"max",0 if n==0 else 10,nwg=vv[4],first=0),1)]
    open(f"q{n}.s","w").write(gen1.build(ks))
```
